```python
import torch

def _softmax(x, axis=-1):
    return torch.softmax(x, dim=axis)
def _gelu(x):
    return torch.nn.functional.gelu(x, approximate="tanh")
def _silu(x):
    return torch.nn.functional.silu(x)
def _sigmoid(x):
    return torch.sigmoid(x)
def _layernorm(x, axis=-1, eps=1e-5):
    m = x.mean(dim=axis, keepdim=True)
    v = x.var(dim=axis, keepdim=True, unbiased=False)
    return (x - m) / torch.sqrt(v + eps)
def _scatter_add(tgt, idx, src, axis=0):
    return tgt.clone().index_add_(axis, idx, src)
def _segment_sum(src, seg, n):
    out = torch.zeros((n,) + src.shape[1:], dtype=src.dtype)
    return out.index_add_(0, seg, src)
def _pad(x, pw):
    flat = tuple(v for pair in reversed(pw) for v in pair)
    return torch.nn.functional.pad(x, flat)

kernel_name = 'gated_mix__sliding_local_dilated__glu_gated_glu__prompt'

def setup_inputs():

    _w = (lambda a: (lambda t: t.to(torch.bfloat16) if t.is_floating_point() else t)(torch.as_tensor(a)))
    def _A_setup():
        B, S, D = 1, 2048, 512
        return {
            "x": _w((lambda *s: torch.randn(*s, dtype=torch.bfloat16) * 0.05)(B, S, D)),
            "wqkv": _w((lambda *s: torch.randn(*s, dtype=torch.bfloat16) * 0.8)(D, 3 * D)),
            "wo": _w((lambda *s: torch.randn(*s, dtype=torch.bfloat16) * 0.05)(D, D)),
        }
    _A_in = _A_setup()

    def _B_setup():
        B, S, D, F = 1, 2048, 512, 1792
        return {
            "x": _w((lambda *s: torch.randn(*s, dtype=torch.bfloat16) * 0.05)(B, S, D)),
            "w_gate": _w((lambda *s: torch.randn(*s, dtype=torch.bfloat16) * 3.2)(D, F)),
            "w_up": _w((lambda *s: torch.randn(*s, dtype=torch.bfloat16) * 0.1)(D, F)),
            "w_down": _w((lambda *s: torch.randn(*s, dtype=torch.bfloat16) * 0.1)(F, D)),
        }
    _B_in = _B_setup()

    return {
        "A_x": _A_in["x"],
        "A_wqkv": _A_in["wqkv"],
        "A_wo": _A_in["wo"],
        "B_x": _B_in["x"],
        "B_w_gate": _B_in["w_gate"],
        "B_w_up": _B_in["w_up"],
        "B_w_down": _B_in["w_down"],
        "gate_w": _w((lambda *s: torch.randn(*s, dtype=torch.bfloat16) * 0.05)(512) * 16.0),
    }

def reference(A_x, A_wqkv, A_wo, B_x, B_w_gate, B_w_up, B_w_down, gate_w):
    def _A_ref(x, wqkv, wo):
        B, S, D = x.shape
        H = 32; Dh = D // H
        W, dil = 8, 2
        qkv = (lambda x, *d: x.permute(*d))((x @ wqkv).reshape(B, S, 3, H, Dh), 2, 0, 3, 1, 4)
        q, k, v = qkv[0], qkv[1], qkv[2]
        scale = Dh ** -0.5
        pos = torch.arange(S)
        off = torch.arange(W) * dil
        idx = pos[:, None] - off[None, :]
        mask = idx >= 0
        idx_c = torch.where(mask, idx, 0).reshape(-1)
        kg = k[:, :, idx_c, :].reshape(B, H, S, W, Dh)
        vg = v[:, :, idx_c, :].reshape(B, H, S, W, Dh)
        logits = torch.einsum("bhsd,bhswd->bhsw", q, kg) * scale
        logits = torch.where(mask[None, None, :, :], logits, -1e9)
        attn = _softmax(logits, axis=-1)
        o = torch.einsum("bhsw,bhswd->bhsd", attn, vg)
        return (lambda x, *d: x.permute(*d))(o, 0, 2, 1, 3).reshape(B, S, D) @ wo

    def _B_ref(x, w_gate, w_up, w_down):
        g = torch.einsum("bsd,df->bsf", x, w_gate)
        u = torch.einsum("bsd,df->bsf", x, w_up)
        h = _sigmoid(g) * u
        return torch.einsum("bsf,fd->bsd", h, w_down)

    x = A_x
    g = _sigmoid((x * gate_w).sum(-1, keepdims=True))
    a = _A_ref(x, A_wqkv, A_wo)
    b = _B_ref(x, B_w_gate, B_w_up, B_w_down)
    return g * a + (1 - g) * b
```

```python
import sys
NAME = "gated_mix__sliding_local_dilated__glu_gated_glu__prompt"

NKC = 72
WS_FRAG_BYTES = 128 * NKC * 1024
WS_GATE_OFF = WS_FRAG_BYTES
LOG2E = 1.4426950408889634

import struct
def f2u(x): return struct.unpack("<I", struct.pack("<f", x))[0]

class Asm:
    def __init__(self):
        self.lines = []
        self.vm = []
    def __call__(self, s):
        if isinstance(s, (list, tuple)) and not (len(s) == 2 and isinstance(s, tuple)):
            for x in s: self(x)
            return
        if callable(s):
            s(self); return
        if isinstance(s, tuple):
            self.lines.append("  " + s[0]); self.vm.append(s[1])
            assert len(self.vm) <= 63, len(self.vm)
            return
        self.lines.append(("" if s.endswith(":") else "  ") + s)
    def vmcount(self, pred):
        idx = -1
        for i, t in enumerate(self.vm):
            if pred(t): idx = i
        if idx < 0: return None
        n = len(self.vm) - 1 - idx
        self.vm = self.vm[idx + 1:]
        return n
    def wait(self, pred=None, lgkm=None):
        parts = []
        if pred is not None:
            n = self.vmcount(pred)
            if n is not None:
                assert n <= 63, n
                parts.append(f"vmcnt({n})")
        if lgkm is not None: parts.append(f"lgkmcnt({lgkm})")
        if parts: self("s_waitcnt " + " ".join(parts))
    def text(self): return "\n".join(self.lines)

def vr(b, n=4): return f"v[{b}:{b+n-1}]"
def ar(b, n=4): return f"a[{b}:{b+n-1}]"

SX, SW0, SW1, SWS, SWO, SWD, SOUT, SG = 4, 8, 12, 16, 20, 24, 28, 32
P_X, P_WQKV, P_WO, P_BX, P_WG, P_WU, P_WD, P_GW, P_OUT, P_DBG, P_WS = 36, 38, 40, 42, 44, 46, 48, 50, 52, 54, 56
S_W = 60
S_SOFF = 61
S_XCD, S_J = 62, 63
S_T0, S_T1, S_T2, S_T3 = 64, 65, 66, 67
S_WB, S_XB = 68, 69
S_RB, S_CG = 70, 71
S_M0, S_M1, S_M2, S_M3 = 72, 74, 76, 78
S_C0 = 80

def srd(a, d, p, size, off=0):
    if off:
        a(f"s_add_u32 s{d}, s{p}, {off}")
        a(f"s_addc_u32 s{d+1}, s{p+1}, 0")
    else:
        a(f"s_mov_b32 s{d}, s{p}")
        a(f"s_mov_b32 s{d+1}, s{p+1}")
    a(f"s_mov_b32 s{d+2}, {size}")
    a(f"s_mov_b32 s{d+3}, 0x20000")

def sr(d): return f"s[{d}:{d+3}]"

def interleave(a, mfmas, fillers, tail=None, per_gap=2, start=0):
    n = len(mfmas)
    gaps = [[] for _ in range(n)]
    tail = tail or {}
    flat = fillers
    last = n - 3 if tail else n - 1
    g = start
    total = sum(1 for f in flat if f != "brk")
    span = max(1, last - start)
    cnt = 0
    for f in flat:
        if f == "brk":
            g += 1
            continue
        want = start + (cnt * span) // max(total, 1)
        if want > g: g = want
        while g < n - 1 and len(gaps[g]) >= per_gap: g += 1
        assert g <= last, (g, last)
        gaps[g].append(f)
        cnt += 1
    for i, m in enumerate(mfmas):
        a(m)
        for f in gaps[i]: a(f)
        if i in tail:
            for f in tail[i]: a(f)

def common_prologue(a, nwg, done):
    a(f"s_cmp_ge_u32 s2, {nwg}")
    a(f"s_cbranch_scc1 {done}")
    a(f"s_load_dwordx16 s[{P_X}:{P_X+15}], s[0:1], 0")
    a(f"s_load_dwordx4 s[{P_OUT}:{P_OUT+3}], s[0:1], 64")
    a(f"s_load_dwordx2 s[{P_WS}:{P_WS+1}], s[0:1], 80")
    a("v_lshrrev_b32 v250, 6, v0")
    a("v_and_b32 v251, 63, v0")
    a(f"v_readfirstlane_b32 s{S_W}, v250")
    a(f"s_and_b32 s{S_XCD}, s2, 7")
    a(f"s_lshr_b32 s{S_J}, s2, 3")

def code_prefetch(a, nbytes):
    a(f"s_getpc_b64 s[{S_T0}:{S_T1}]")
    a("v_lshlrev_b32 v249, 7, v0")
    for i in range((nbytes + 32767) // 32768):
        a(f"v_cmp_gt_u32 vcc, {min(256, (nbytes - i*32768 + 127)//128)}, v0")
        a(f"s_and_saveexec_b64 s[{S_T2}:{S_T3}], vcc")
        a((f"global_load_dword a255, v249, s[{S_T0}:{S_T1}]", "pf"))
        a(f"s_mov_b64 exec, s[{S_T2}:{S_T3}]")
        a("v_add_u32 v249, 0x8000, v249")

V_W0, V_W1 = 176, 177
V_X = 178
V_WR = 186
V_XR = 190
V_L16 = 196
V_T = 200

def stage1_ffn(a, opt):
    NT = 11
    XBASE, XSLOT, WSLOT = 81920, 24576, 16384
    L = 251
    a(f"s_mul_i32 s{S_T0}, s{S_XCD}, 21")
    a(f"s_add_u32 s{S_T0}, s{S_T0}, s{S_J}")
    a(f"s_mul_i32 s{S_CG}, s{S_T0}, 5462")
    a(f"s_lshr_b32 s{S_CG}, s{S_CG}, 16")
    a(f"s_mul_i32 s{S_T1}, s{S_CG}, 12")
    a(f"s_sub_u32 s{S_RB}, s{S_T0}, s{S_T1}")
    a(f"s_lshl_b32 s{S_WB}, s{S_W}, 12")
    a(f"s_lshl_b32 s{S_XB}, s{S_W}, 10")
    a(f"s_and_b32 s{S_T2}, s{S_W}, 1")
    a(f"s_lshl_b32 s{S_T2}, s{S_T2}, 2")
    t0, t1, t2, t3 = V_T, V_T + 1, V_T + 2, V_T + 3
    a(f"v_lshrrev_b32 v{t0}, 4, v{L}")
    a(f"v_or_b32 v{t1}, s{S_T2}, v{t0}")
    a(f"v_and_b32 v{t2}, 7, v{L}")
    a(f"v_xor_b32 v{t2}, v{t2}, v{t1}")
    a(f"v_lshlrev_b32 v{t2}, 4, v{t2}")
    a(f"v_lshrrev_b32 v{t3}, 3, v{L}")
    a(f"s_mul_i32 s{S_T0}, s{S_RB}, 176")
    a(f"s_lshl_b32 s{S_T1}, s{S_W}, 3")
    a(f"s_add_u32 s{S_T0}, s{S_T0}, s{S_T1}")
    a(f"v_add_u32 v{t3}, s{S_T0}, v{t3}")
    a(f"v_lshl_add_u32 v{V_X}, v{t3}, 10, v{t2}")
    for m in range(1, 6):
        a(f"v_add_u32 v{V_X+m}, {32768*m}, v{V_X}")
    a(f"s_cmp_ge_u32 s{S_W}, 2")
    a(f"s_cselect_b32 s{S_T0}, 0x40000000, 0")
    a(f"v_or_b32 v{V_X+5}, s{S_T0}, v{V_X+5}")
    a(f"v_lshlrev_b32 v{t2}, 1, v{t1}")
    a(f"v_and_b32 v{t3}, 15, v{L}")
    a(f"v_xor_b32 v{t2}, v{t2}, v{t3}")
    a(f"v_lshlrev_b32 v{t2}, 4, v{t2}")
    a(f"v_add_u32 v{t3}, s{S_T1}, v{t0}")
    a(f"v_mul_u32_u24 v{t3}, 3584, v{t3}")
    a(f"s_lshl_b32 s{S_T0}, s{S_CG}, 8")
    a(f"v_add3_u32 v{V_W0}, v{t3}, v{t2}, s{S_T0}")
    a(f"v_add_u32 v{V_W1}, {4*3584}, v{V_W0}")
    a("s_waitcnt lgkmcnt(0)")
    srd(a, SX, P_X, 2048 * 1024)
    srd(a, SW0, P_WG, 512 * 3584)
    srd(a, SW1, P_WU, 512 * 3584)
    srd(a, SWS, P_WS, WS_FRAG_BYTES)

    def dma_w(s):
        out = []
        if s >= 16: return out
        out.append(f"s_mov_b32 s{S_SOFF}, {s*32*3584}")
        for mat in (0, 1):
            for half in (0, 1):
                out.append(f"s_add_u32 m0, s{S_WB}, {(s%5)*WSLOT + mat*2048 + half*1024}")
                out.append("brk")
                out.append((f"buffer_load_dwordx4 v{V_W1 if half else V_W0}, {sr(SW1 if mat else SW0)}, s{S_SOFF} offen lds", ("W", s)))
        return out
    def dma_x(j, ms):
        out = []
        if j >= 8: return out
        for m in ms:
            out.append(f"s_add_u32 m0, s{S_XB}, {XBASE + (j%3)*XSLOT + m*4096 - 128*j}")
            out.append("brk")
            out.append((f"buffer_load_dwordx4 v{V_X+m}, {sr(SX)}, 0 offen offset:{128*j} lds", ("X", j)))
        return out
    def plain(lst):
        for f in lst: a("s_nop 0" if f == "brk" else f)
    plain(dma_x(0, range(6))); plain(dma_w(0)); plain(dma_w(1)); plain(dma_x(1, range(6)))
    plain(dma_w(2)); plain(dma_w(3)); plain(dma_x(2, range(6))); plain(dma_w(4))
    a(f"v_lshrrev_b32 v{t1}, 2, v{L}")
    a(f"v_and_b32 v{t1}, 3, v{t1}")
    a(f"v_and_b32 v{t2}, 1, v{t0}")
    a(f"v_lshl_or_b32 v{t2}, v{t2}, 2, v{t1}")
    a(f"s_lshl_b32 s{S_T0}, s{S_W}, 1")
    a(f"v_xor_b32 v{t2}, s{S_T0}, v{t2}")
    a(f"v_lshlrev_b32 v{t2}, 5, v{t2}")
    a(f"v_lshl_add_u32 v{t2}, v{t0}, 12, v{t2}")
    a(f"v_lshl_add_u32 v{t2}, v{t1}, 8, v{t2}")
    a(f"v_and_b32 v{t3}, 3, v{L}")
    a(f"v_lshl_add_u32 v{V_WR}, v{t3}, 3, v{t2}")
    a(f"v_xor_b32 v{V_WR+1}, 32, v{V_WR}")
    a(f"v_add_u32 v{V_WR+2}, 0x10000, v{V_WR}")
    a(f"v_add_u32 v{V_WR+3}, 0x10000, v{V_WR+1}")
    a(f"v_and_b32 v{t1}, 15, v{L}")
    a(f"v_lshrrev_b32 v{t2}, 1, v{t1}")
    a(f"v_xor_b32 v{t2}, v{t2}, v{t0}")
    a(f"v_lshlrev_b32 v{t2}, 4, v{t2}")
    a(f"v_lshl_add_u32 v{t2}, v{t1}, 7, v{t2}")
    a(f"v_xor_b32 v{t3}, 64, v{t2}")
    for sl in range(3):
        a(f"v_add_u32 v{V_XR+2*sl}, {XBASE + sl*XSLOT}, v{t2}")
        a(f"v_add_u32 v{V_XR+2*sl+1}, {XBASE + sl*XSLOT}, v{t3}")
    a(f"v_lshlrev_b32 v{V_L16}, 4, v{L}")

    def WF(p, c): return p * 16 + c * 4
    def XF(p, t): return 32 + p * 44 + t * 4
    def reads(s):
        out = []
        if s >= 16: return out
        p = s & 1
        sl = s % 5
        for c in range(4):
            mat, T = c >> 1, c & 1
            for h in (0, 1):
                off = sl * WSLOT + mat * 2048 + h * 1024
                reg = V_WR + T
                if off >= 65536: off -= 65536; reg += 2
                out.append(f"ds_read_b64_tr_b16 {ar(WF(p,c)+2*h, 2)}, v{reg} offset:{off}")
        j, kk = s >> 1, s & 1
        for t in range(NT):
            out.append(f"ds_read_b128 {ar(XF(p,t))}, v{V_XR + 2*(j%3) + kk} offset:{t*2048}")
        return out
    def need(s):
        return lambda t: t == ("W", s) or t == ("X", s >> 1)
    a.wait(need(0))
    a("s_barrier")
    plain(reads(0))
    a.wait(need(1), lgkm=0)
    a("s_barrier")
    for s in range(16):
        p = s & 1
        mf = []
        for t in range(NT):
            for c in range(4):
                d = (t * 4 + c) * 4
                mf.append(f"v_mfma_f32_16x16x32_bf16 {vr(d)}, {ar(WF(p,c))}, {ar(XF(p,t))}, {'0' if s == 0 else vr(d)}")
        rd = reads(s + 1)
        dm = dma_w(s + 5)
        if s >= 1:
            j = (s - 1) // 2 + 3
            dm = dm + dma_x(j, range(0, 3) if (s & 1) else range(3, 6))
        fl = []
        ri = 0
        groups = []
        cur = []
        for f in dm:
            cur.append(f)
            if isinstance(f, tuple): groups.append(cur); cur = []
        per = max(1, (len(rd) + max(len(groups), 1) - 1) // max(len(groups), 1))
        gi = 0
        while ri < len(rd) or gi < len(groups):
            fl += rd[ri:ri + per]; ri += per
            if gi < len(groups): fl += groups[gi]; gi += 1
        tail = {}
        if s < 15:
            tail[len(mf) - 2] = [(lambda aa, s=s: aa.wait(need(s + 2), lgkm=0)), "s_barrier"] if s < 14 else [(lambda aa: aa.wait(None, lgkm=0))]
        interleave(a, mf, fl, tail or {len(mf) - 2: []})
    a(f"s_mul_i32 s{S_T0}, s{S_RB}, {11*NKC}")
    a(f"s_lshl_b32 s{S_T1}, s{S_CG}, 2")
    a(f"s_add_u32 s{S_T0}, s{S_T0}, s{S_T1}")
    a(f"s_add_u32 s{S_T0}, s{S_T0}, s{S_W}")
    a(f"s_add_u32 s{S_T0}, s{S_T0}, 16")
    a(f"s_lshl_b32 s{S_SOFF}, s{S_T0}, 10")
    a(f"s_mov_b32 s{S_C0}, {f2u(-LOG2E)}")
    a("s_nop 4")
    for t in range(NT):
        g = t * 16; u = g + 8
        o = V_T + 4 * (t & 1)
        for e in range(8): a(f"v_mul_f32 v{g+e}, s{S_C0}, v{g+e}")
        for e in range(8): a(f"v_exp_f32 v{g+e}, v{g+e}")
        for e in range(8): a(f"v_add_f32 v{g+e}, 1.0, v{g+e}")
        for e in range(8): a(f"v_rcp_f32 v{g+e}, v{g+e}")
        for e in range(8): a(f"v_mul_f32 v{g+e}, v{g+e}, v{u+e}")
        for e in range(4): a(f"v_cvt_pk_bf16_f32 v{o+e}, v{g+2*e}, v{g+2*e+1}")
        a((f"buffer_store_dwordx4 {vr(o)}, v{V_L16}, {sr(SWS)}, s{S_SOFF} offen {opt['st']}", ("ST", t)))
        a(f"s_add_u32 s{S_SOFF}, s{S_SOFF}, {NKC*1024}")

def stage1_qkv(a, opt):
    XBASE, XSLOT, WSLOT, GWBASE = 61440, 28672, 12288, 147456
    L = 251
    V_WQ = 176
    V_GX = 197
    V_GW = 199
    t0, t1, t2, t3 = V_T, V_T + 1, V_T + 2, V_T + 3
    a(f"s_sub_u32 s{S_RB}, s{S_J}, 21")
    a(f"s_mov_b32 s{S_CG}, s{S_XCD}")
    a(f"s_mul_i32 s{S_WB}, s{S_W}, 3072")
    a(f"s_lshl_b32 s{S_XB}, s{S_W}, 10")
    a(f"s_and_b32 s{S_T2}, s{S_W}, 1")
    a(f"s_lshl_b32 s{S_T3}, s{S_T2}, 2")
    a(f"v_lshrrev_b32 v{t0}, 4, v{L}")
    a(f"v_or_b32 v{t1}, s{S_T3}, v{t0}")
    a(f"v_and_b32 v{t2}, 7, v{L}")
    a(f"v_xor_b32 v{t2}, v{t2}, v{t1}")
    a(f"v_lshlrev_b32 v{t2}, 4, v{t2}")
    a(f"v_lshrrev_b32 v{t3}, 3, v{L}")
    a(f"s_mul_i32 s{S_T0}, s{S_RB}, 192")
    a(f"s_lshl_b32 s{S_T1}, s{S_W}, 3")
    a(f"s_add_u32 s{S_T0}, s{S_T0}, s{S_T1}")
    a(f"s_sub_u32 s{S_T0}, s{S_T0}, 16")
    a(f"v_add_u32 v{t3}, s{S_T0}, v{t3}")
    a(f"v_lshl_add_u32 v{V_X}, v{t3}, 10, v{t2}")
    for m in range(1, 7):
        a(f"v_add_u32 v{V_X+m}, {32768*m}, v{V_X}")
    a(f"s_cmp_ge_u32 s{S_W}, 2")
    a(f"s_cselect_b32 s{S_T0}, 0x40000000, 0")
    a(f"v_or_b32 v{V_X+6}, s{S_T0}, v{V_X+6}")
    a(f"v_and_b32 v{t1}, 1, v{t0}")
    a(f"v_lshlrev_b32 v{t1}, 1, v{t1}")
    a(f"v_or_b32 v{t1}, s{S_T3}, v{t1}")
    a(f"v_and_b32 v{t2}, 7, v{L}")
    a(f"v_xor_b32 v{t2}, v{t2}, v{t1}")
    a(f"v_lshlrev_b32 v{t2}, 4, v{t2}")
    a(f"v_lshrrev_b32 v{t3}, 3, v{L}")
    a(f"v_add_u32 v{t3}, s{S_T1}, v{t3}")
    a(f"v_mul_u32_u24 v{t3}, 3072, v{t3}")
    a(f"s_lshl_b32 s{S_T0}, s{S_CG}, 7")
    a(f"v_add3_u32 v{V_WQ}, v{t3}, v{t2}, s{S_T0}")
    a(f"v_lshlrev_b32 v{V_L16}, 4, v{L}")
    a("s_waitcnt lgkmcnt(0)")
    srd(a, SX, P_X, 2048 * 1024)
    srd(a, SW0, P_WQKV, 512 * 3072)
    srd(a, SW1, P_GW, 1024)
    srd(a, SWS, P_WS, WS_FRAG_BYTES)
    srd(a, SG, P_WS, 2048 * 8, WS_GATE_OFF)

    def dma_w(s):
        out = []
        if s >= 16: return out
        out.append(f"s_mov_b32 s{S_SOFF}, {s*32*3072}")
        out.append(f"s_add_u32 m0, s{S_WB}, {(s%5)*WSLOT}")
        out.append("brk")
        for mat in range(3):
            out.append((f"buffer_load_dwordx4 v{V_WQ}, {sr(SW0)}, s{S_SOFF} offen offset:{mat*1024} lds", ("W", s)))
        return out
    def dma_x(j, ms):
        out = []
        if j >= 8: return out
        for m in ms:
            out.append(f"s_add_u32 m0, s{S_XB}, {XBASE + (j%3)*XSLOT + m*4096 - 128*j}")
            out.append("brk")
            out.append((f"buffer_load_dwordx4 v{V_X+m}, {sr(SX)}, 0 offen offset:{128*j} lds", ("X", j)))
        return out
    def plain(lst):
        for f in lst: a("s_nop 0" if f == "brk" else f)
    a(f"s_mov_b32 m0, {GWBASE}")
    a("s_nop 0")
    a((f"buffer_load_dwordx4 v{V_L16}, {sr(SW1)}, 0 offen lds", ("X", 0)))
    plain(dma_x(0, range(7))); plain(dma_w(0)); plain(dma_w(1)); plain(dma_x(1, range(7)))
    plain(dma_w(2)); plain(dma_w(3)); plain(dma_x(2, range(7))); plain(dma_w(4))
    a(f"v_lshrrev_b32 v{t1}, 2, v{L}")
    a(f"v_and_b32 v{t1}, 3, v{t1}")
    a(f"v_and_b32 v{t2}, 1, v{t0}")
    a(f"v_lshlrev_b32 v{t2}, 1, v{t2}")
    a(f"v_lshrrev_b32 v{t3}, 1, v{t1}")
    a(f"v_or_b32 v{t2}, v{t2}, v{t3}")
    a(f"s_lshl_b32 s{S_T0}, s{S_T2}, 1")
    a(f"v_xor_b32 v{t2}, s{S_T0}, v{t2}")
    a(f"v_lshlrev_b32 v{t2}, 5, v{t2}")
    a(f"v_mul_u32_u24 v{t3}, 3072, v{t0}")
    a(f"v_add_u32 v{t2}, v{t2}, v{t3}")
    a(f"v_lshl_add_u32 v{t2}, v{t1}, 7, v{t2}")
    a(f"v_and_b32 v{t3}, 3, v{L}")
    a(f"v_lshl_add_u32 v{V_WR}, v{t3}, 3, v{t2}")
    a(f"v_xor_b32 v{V_WR+1}, 32, v{V_WR}")
    a(f"v_and_b32 v{t1}, 15, v{L}")
    a(f"v_lshrrev_b32 v{t2}, 1, v{t1}")
    a(f"v_xor_b32 v{t2}, v{t2}, v{t0}")
    a(f"v_lshlrev_b32 v{t2}, 4, v{t2}")
    a(f"v_lshl_add_u32 v{t2}, v{t1}, 7, v{t2}")
    a(f"s_lshl_b32 s{S_T0}, s{S_CG}, 2")
    a(f"s_add_u32 s{S_T0}, s{S_T0}, s{S_W}")
    a(f"s_min_u32 s{S_T0}, s{S_T0}, 11")
    a(f"s_add_u32 s{S_T0}, s{S_T0}, 1")
    a(f"s_lshl_b32 s{S_T0}, s{S_T0}, 11")
    a(f"s_add_u32 s{S_T0}, s{S_T0}, {XBASE}")
    a(f"v_add_u32 v{V_GX}, s{S_T0}, v{t2}")
    a(f"v_xor_b32 v{V_GX+1}, 64, v{V_GX}")
    a(f"s_lshr_b32 s{S_T0}, s{S_W}, 1")
    a(f"s_mul_i32 s{S_T0}, s{S_T0}, {6*2048}")
    a(f"v_add_u32 v{t2}, s{S_T0}, v{t2}")
    a(f"v_xor_b32 v{t3}, 64, v{t2}")
    for sl in range(3):
        a(f"v_add_u32 v{V_XR+2*sl}, {XBASE + sl*XSLOT}, v{t2}")
        a(f"v_add_u32 v{V_XR+2*sl+1}, {XBASE + sl*XSLOT}, v{t3}")
    a(f"v_lshlrev_b32 v{V_GW}, 4, v{t0}")
    a(f"v_add_u32 v{V_GW}, {GWBASE}, v{V_GW}")

    def Q(h, t): return (h * 6 + (t - 1)) * 4
    def K(h, t): return 48 + (h * 7 + t) * 4
    def V(h, t): return 104 + (h * 7 + t) * 4
    GA = 160
    def WF(p, mat, h): return p * 24 + (mat * 2 + h) * 4
    def XF(p, t): return 48 + p * 28 + t * 4
    def GX(p): return 104 + p * 8
    def GW(p): return 108 + p * 8
    def reads(s):
        out = []
        if s >= 16: return out
        p = s & 1; sl = s % 5
        for mat in range(3):
            for hh in (0, 1):
                for h in (0, 1):
                    off = sl * WSLOT + mat * 1024 + h * 512
                    out.append(f"ds_read_b64_tr_b16 {ar(WF(p,mat,hh)+2*h, 2)}, v{V_WR+hh} offset:{off}")
        j, kk = s >> 1, s & 1
        for t in range(7):
            out.append(f"ds_read_b128 {ar(XF(p,t))}, v{V_XR + 2*(j%3) + kk} offset:{t*2048}")
        out.append(f"ds_read_b128 {ar(GX(p))}, v{V_GX+kk} offset:{(j%3)*XSLOT}")
        out.append(f"ds_read_b128 {ar(GW(p))}, v{V_GW} offset:{s*64}")
        return out
    def need(s):
        return lambda t: t == ("W", s) or t == ("X", s >> 1)
    a.wait(need(0))
    a("s_barrier")
    plain(reads(0))
    a.wait(need(1), lgkm=0)
    a("s_barrier")
    for s in range(16):
        p = s & 1
        mf = []
        def M(d, A, B): mf.append(f"v_mfma_f32_16x16x32_bf16 {vr(d)}, {ar(A)}, {ar(B)}, {'0' if s == 0 else vr(d)}")
        M(GA, GW(p), GX(p))
        for t in range(7):
            for hh in (0, 1):
                if t >= 1: M(Q(hh, t), WF(p, 0, hh), XF(p, t))
                M(K(hh, t), WF(p, 1, hh), XF(p, t))
                M(V(hh, t), XF(p, t), WF(p, 2, hh))
        rd = reads(s + 1)
        dm = dma_w(s + 5)
        if s >= 1:
            j = (s - 1) // 2 + 3
            dm = dm + dma_x(j, range(0, 4) if (s & 1) else range(4, 7))
        groups = []; cur = []
        for f in dm:
            cur.append(f)
            if isinstance(f, tuple): groups.append(cur); cur = []
        per = max(1, (len(rd) + max(len(groups), 1) - 1) // max(len(groups), 1))
        fl = []; ri = 0; gi = 0
        while ri < len(rd) or gi < len(groups):
            fl += rd[ri:ri + per]; ri += per
            if gi < len(groups): fl += groups[gi]; gi += 1
        tail = {}
        if s < 15:
            tail[len(mf) - 2] = [(lambda aa, s=s: aa.wait(need(s + 2), lgkm=0)), "s_barrier"] if s < 14 else [(lambda aa: aa.wait(None, lgkm=0))]
        interleave(a, mf, fl, tail or {len(mf) - 2: []})

    SELY, SELP = 176, 178
    j_, g_, par, d1 = t0, t1, t2, t3
    a(f"v_and_b32 v{j_}, 15, v{L}")
    a(f"v_lshrrev_b32 v{g_}, 4, v{L}")
    a(f"v_and_b32 v{par}, 1, v{j_}")
    a(f"v_lshlrev_b32 v{g_}, 2, v{g_}")
    a(f"v_sub_u32 v{d1}, v{j_}, v{g_}")
    a(f"v_sub_u32 v{d1}, v{d1}, v{par}")
    a(f"v_cmp_le_i32 s[{S_M0}:{S_M0+1}], 0, v{d1}")
    a(f"v_cmp_le_i32 s[{S_M1}:{S_M1+1}], 2, v{d1}")
    a(f"v_cmp_eq_u32 vcc, 1, v{par}")
    t4, t5 = V_T + 4, V_T + 5
    a(f"v_mov_b32 v{t4}, 0x01000c0c")
    a(f"v_mov_b32 v{t5}, 0x03020c0c")
    a(f"v_cndmask_b32 v{t4}, v{t4}, v{t5}, vcc")
    a(f"v_add_u32 v{t5}, 0x04040000, v{t4}")
    a(f"v_cndmask_b32 v{SELY}, v{t4}, v{t5}, s[{S_M0}:{S_M0+1}]")
    a(f"v_cndmask_b32 v{SELY+1}, v{t4}, v{t5}, s[{S_M1}:{S_M1+1}]")
    zero = V_T + 6
    a(f"v_mov_b32 v{zero}, 0x0c0c0c0c")
    for u in (0, 1):
        lo = 0x0c0c0000 | ((2*u+1) << 8) | (2*u)
        hi = 0x00000c0c | ((2*u+1) << 24) | ((2*u) << 16)
        a(f"v_mov_b32 v{t4}, {lo}")
        a(f"v_mov_b32 v{t5}, {hi}")
        a(f"v_cndmask_b32 v{t4}, v{t4}, v{t5}, vcc")
        M_ = S_M0 if u == 0 else S_M1
        a(f"v_cndmask_b32 v{SELP+u}, v{t4}, v{zero}, s[{M_}:{M_+1}]")
        a(f"v_cndmask_b32 v{SELP+2+u}, v{zero}, v{t4}, s[{M_}:{M_+1}]")
    a(f"s_lshr_b32 s{S_T0}, s{S_W}, 1")
    a(f"s_or_b32 s{S_T0}, s{S_T0}, s{S_RB}")
    a(f"s_not_b64 s[{S_M2}:{S_M2+1}], s[{S_M0}:{S_M0+1}]")
    a(f"s_not_b64 s[{S_M3}:{S_M3+1}], s[{S_M1}:{S_M1+1}]")
    a(f"s_cmp_eq_u32 s{S_T0}, 0")
    a(f"s_cselect_b64 s[{S_M2}:{S_M2+1}], s[{S_M2}:{S_M2+1}], 0")
    a(f"s_cselect_b64 s[{S_M3}:{S_M3+1}], s[{S_M3}:{S_M3+1}], 0")
    NEG = 182
    a(f"v_mov_b32 v{NEG}, {f2u(-4e9)}")
    a(f"s_mov_b32 s{S_C0}, {f2u(0.25*LOG2E)}")
    a(f"s_mov_b32 s{S_C0+1}, {f2u(-LOG2E)}")
    a(f"v_cvt_pk_bf16_f32 v{t4}, v{GA}, v{GA}")
    a(f"v_and_b32 v{t4}, 0xffff0000, v{t4}")
    a(f"v_mul_f32 v{t4}, s{S_C0+1}, v{t4}")
    a(f"v_exp_f32 v{t4}, v{t4}")
    a("s_nop 0")
    a(f"v_add_f32 v{t4}, 1.0, v{t4}")
    a(f"v_rcp_f32 v{t4}, v{t4}")
    a("s_nop 0")
    a(f"v_cvt_pk_bf16_f32 v{t4}, v{t4}, v{t4}")
    a(f"v_and_b32 v{t4}, 0xffff0000, v{t4}")
    a(f"v_sub_f32 v{t5}, 1.0, v{t4}")
    a(f"v_cvt_pk_bf16_f32 v{t5}, v{t5}, v{t5}")
    a(f"v_and_b32 v{t5}, 0xffff0000, v{t5}")
    a(f"s_lshl_b32 s{S_T0}, s{S_CG}, 2")
    a(f"s_add_u32 s{S_T0}, s{S_T0}, s{S_W}")
    a(f"s_mul_i32 s{S_T1}, s{S_RB}, 12")
    a(f"s_add_u32 s{S_T1}, s{S_T1}, s{S_T0}")
    a(f"s_lshl_b32 s{S_T1}, s{S_T1}, 7")
    a(f"s_cmp_ge_u32 s{S_T0}, 12")
    a(f"s_cselect_b32 s{S_T1}, 0x40000000, s{S_T1}")
    a(f"v_lshlrev_b32 v{g_}, 16, v{g_}")
    a(f"v_lshl_add_u32 v{g_}, v{j_}, 3, v{g_}")
    a(f"v_add_u32 v{g_}, s{S_T1}, v{g_}")
    a((f"buffer_store_dwordx2 {vr(t4,2)}, v{g_}, {sr(SG)}, 0 offen {opt['st']}", ("ST", -1)))
    VP = 208
    for hh in (0, 1):
        for t in range(7):
            if t >= 1:
                q = Q(hh, t)
                a(f"v_cvt_pk_bf16_f32 v{q}, v{q}, v{q+1}")
                a(f"v_cvt_pk_bf16_f32 v{q+1}, v{q+2}, v{q+3}")
            k = K(hh, t)
            a(f"v_cvt_pk_bf16_f32 v{k}, v{k}, v{k+1}")
            a(f"v_cvt_pk_bf16_f32 v{k+1}, v{k+2}, v{k+3}")
            v = V(hh, t)
            a(f"v_cvt_pk_bf16_f32 v{VP+hh*14+2*t}, v{v}, v{v+1}")
            a(f"v_cvt_pk_bf16_f32 v{VP+hh*14+2*t+1}, v{v+2}, v{v+3}")
    a(f"s_lshr_b32 s{S_T0}, s{S_W}, 1")
    a(f"s_mul_i32 s{S_T0}, s{S_T0}, 6")
    a(f"s_mul_i32 s{S_T1}, s{S_RB}, 12")
    a(f"s_add_u32 s{S_T0}, s{S_T0}, s{S_T1}")
    a(f"s_mul_i32 s{S_T0}, s{S_T0}, {NKC}")
    a(f"s_lshl_b32 s{S_T1}, s{S_CG}, 1")
    a(f"s_add_u32 s{S_T0}, s{S_T0}, s{S_T1}")
    a(f"s_and_b32 s{S_T1}, s{S_W}, 1")
    a(f"s_add_u32 s{S_T0}, s{S_T0}, s{S_T1}")
    a(f"s_lshl_b32 s{S_SOFF}, s{S_T0}, 10")
    OUT = 236
    for half in (0, 1):
        units = [(t, hh) for t in range(1 + 3 * half, 4 + 3 * half) for hh in (0, 1)]
        def S(n): return 104 + 8 * n
        for n, (t, hh) in enumerate(units):
            a(f"v_mfma_f32_16x16x16_bf16 {vr(S(n))}, {vr(K(hh,t-1),2)}, {vr(Q(hh,t),2)}, 0")
            a(f"v_mfma_f32_16x16x16_bf16 {vr(S(n)+4)}, {vr(K(hh,t),2)}, {vr(Q(hh,t),2)}, 0")
        a("s_nop 7")
        U = range(6)
        for n in U:
            s = S(n)
            a(f"v_cvt_pk_bf16_f32 v{s}, v{s}, v{s+1}")
            a(f"v_cvt_pk_bf16_f32 v{s+1}, v{s+2}, v{s+3}")
            a(f"v_cvt_pk_bf16_f32 v{s+4}, v{s+4}, v{s+5}")
            a(f"v_cvt_pk_bf16_f32 v{s+5}, v{s+6}, v{s+7}")
            a(f"v_perm_b32 v{s+2}, v{s+4}, v{s}, v{SELY}")
            a(f"v_perm_b32 v{s+3}, v{s+5}, v{s+1}, v{SELY+1}")
            if units[n][0] == 1:
                a(f"v_cndmask_b32 v{s+2}, v{s+2}, v{NEG}, s[{S_M2}:{S_M2+1}]")
                a(f"v_cndmask_b32 v{s+3}, v{s+3}, v{NEG}, s[{S_M3}:{S_M3+1}]")
        def allreduce(op):
            for swap in ("v_permlane16_swap_b32", "v_permlane32_swap_b32"):
                for n in U: a(f"v_mov_b32 v{S(n)+1}, v{S(n)}")
                a("s_nop 1")
                for n in U: a(f"{swap} v{S(n)}, v{S(n)+1}")
                a("s_nop 1")
                for n in U: a(f"{op} v{S(n)}, v{S(n)}, v{S(n)+1}")
        for n in U: a(f"v_max_f32 v{S(n)}, v{S(n)+2}, v{S(n)+3}")
        allreduce("v_max_f32")
        for n in U:
            a(f"v_sub_f32 v{S(n)+2}, v{S(n)+2}, v{S(n)}")
            a(f"v_sub_f32 v{S(n)+3}, v{S(n)+3}, v{S(n)}")
        for n in U:
            a(f"v_mul_f32 v{S(n)+2}, s{S_C0}, v{S(n)+2}")
            a(f"v_mul_f32 v{S(n)+3}, s{S_C0}, v{S(n)+3}")
        for n in U:
            a(f"v_exp_f32 v{S(n)+2}, v{S(n)+2}")
            a(f"v_exp_f32 v{S(n)+3}, v{S(n)+3}")
        a("s_nop 0")
        for n in U: a(f"v_add_f32 v{S(n)}, v{S(n)+2}, v{S(n)+3}")
        allreduce("v_add_f32")
        for n in U: a(f"v_rcp_f32 v{S(n)}, v{S(n)}")
        a("s_nop 0")
        for n in U:
            a(f"v_mul_f32 v{S(n)+2}, v{S(n)+2}, v{S(n)}")
            a(f"v_mul_f32 v{S(n)+3}, v{S(n)+3}, v{S(n)}")
        for n in U: a(f"v_cvt_pk_bf16_f32 v{S(n)}, v{S(n)+2}, v{S(n)+3}")
        for n in U:
            for q in range(4):
                a(f"v_perm_b32 v{S(n)+4+q}, v{S(n)}, v{S(n)}, v{SELP+q}")
        a("s_nop 1")
        for n, (t, hh) in enumerate(units):
            a(f"v_mfma_f32_16x16x32_bf16 {vr(S(n))}, {vr(VP+hh*14+2*(t-1))}, {vr(S(n)+4)}, 0")
        a("s_nop 7")
        for n, (t, hh) in enumerate(units):
            o = OUT + 4 * (n >> 1) + 2 * hh
            a(f"v_cvt_pk_bf16_f32 v{o}, v{S(n)}, v{S(n)+1}")
            a(f"v_cvt_pk_bf16_f32 v{o+1}, v{S(n)+2}, v{S(n)+3}")
            if hh == 1:
                a((f"buffer_store_dwordx4 {vr(OUT + 4*(n>>1))}, v{V_L16}, {sr(SWS)}, s{S_SOFF} offen {opt['st']}", ("ST", t)))
                a(f"s_add_u32 s{S_SOFF}, s{S_SOFF}, {NKC*1024}")
        if half == 0: a("s_nop 1")

def stage2(a, opt):
    L = 251
    WREG = 36864
    V_B = 0
    V_ACC = 32
    V_A = 96
    V_BD, V_BR, V_L16b, V_G, V_RW = 240, 241, 245, 246, 248
    t0, t1, t2, t3 = 252, 253, 254, 255
    ld = opt['ld']
    a(f"s_lshl_b32 s{S_RB}, s{S_XCD}, 2")
    a(f"s_lshr_b32 s{S_T0}, s{S_J}, 3")
    a(f"s_add_u32 s{S_RB}, s{S_RB}, s{S_T0}")
    a(f"s_and_b32 s{S_CG}, s{S_J}, 7")
    a(f"s_mul_i32 s{S_WB}, s{S_W}, {WREG}")
    a(f"v_lshrrev_b32 v{t0}, 4, v{L}")
    a(f"v_lshlrev_b32 v{t1}, 1, v{t0}")
    a(f"v_and_b32 v{t2}, 7, v{L}")
    a(f"v_xor_b32 v{t2}, v{t2}, v{t1}")
    a(f"v_lshlrev_b32 v{t2}, 4, v{t2}")
    a(f"v_lshrrev_b32 v{t3}, 3, v{L}")
    a(f"v_lshl_add_u32 v{t2}, v{t3}, 10, v{t2}")
    a(f"s_lshl_b32 s{S_T0}, s{S_CG}, 7")
    a(f"v_add_u32 v{V_BD}, s{S_T0}, v{t2}")
    a(f"v_lshlrev_b32 v{V_L16b}, 4, v{L}")
    a("s_waitcnt lgkmcnt(0)")
    srd(a, SWO, P_WO, 512 * 1024)
    srd(a, SWD, P_WD, 1792 * 1024)
    srd(a, SWS, P_WS, WS_FRAG_BYTES)
    srd(a, SG, P_WS, 2048 * 8, WS_GATE_OFF)
    srd(a, SOUT, P_OUT, 2048 * 1024)
    S_BO, S_BH, S_AO, S_AH = 82, 83, 84, 85
    a(f"s_mul_i32 s{S_BO}, s{S_W}, {4*32*1024}")
    a(f"s_mul_i32 s{S_BH}, s{S_W}, {14*32*1024}")
    a(f"s_mul_i32 s{S_T0}, s{S_RB}, {4*NKC*1024}")
    a(f"s_lshl_b32 s{S_AO}, s{S_W}, 12")
    a(f"s_add_u32 s{S_AO}, s{S_AO}, s{S_T0}")
    a(f"s_mul_i32 s{S_AH}, s{S_W}, {14*1024}")
    a(f"s_add_u32 s{S_AH}, s{S_AH}, s{S_T0}")
    a(f"s_add_u32 s{S_AH}, s{S_AH}, {16*1024}")
    def dma_b(c):
        for n in range(4):
            if c < 4: a(f"s_add_u32 s{S_SOFF}, s{S_BO}, {(c*32 + n*8)*1024}")
            else: a(f"s_add_u32 s{S_SOFF}, s{S_BH}, {((c-4)*32 + n*8)*1024}")
            a(f"s_add_u32 m0, s{S_WB}, {(c%9)*4096 + n*1024}")
            a("s_nop 0")
            a((f"buffer_load_dwordx4 v{V_BD}, {sr(SWO if c < 4 else SWD)}, s{S_SOFF} offen lds", ("B", c)))
    def breg(c, T, n=4, o=0):
        if c < 16: return ar(c * 16 + T * 4 + o, n)
        return vr(V_B + (c - 16) * 16 + T * 4 + o, n)
    def areg(rt, c): return V_A + ((rt * 18 + c) % 36) * 4
    def load_a(rt, c):
        out = []
        base = S_AO if c < 4 else S_AH
        cc = c if c < 4 else c - 4
        q, r = divmod(cc, 4)
        if r == 0: out.append(f"s_add_u32 s{S_SOFF}, s{base}, {rt*NKC*1024 + q*4096}")
        out.append((f"buffer_load_dwordx4 {vr(areg(rt,c))}, v{V_L16b}, {sr(SWS)}, s{S_SOFF} offen offset:{r*1024} {ld}", ("A", rt, c)))
        return out
    for c in range(9): dma_b(c)
    a(f"v_lshrrev_b32 v{t1}, 2, v{L}")
    a(f"v_lshrrev_b32 v{t2}, 1, v{t1}")
    a(f"v_and_b32 v{t2}, 3, v{t2}")
    a(f"v_lshlrev_b32 v{t2}, 5, v{t2}")
    a(f"v_lshl_add_u32 v{t2}, v{t1}, 7, v{t2}")
    a(f"v_and_b32 v{t3}, 3, v{L}")
    a(f"v_lshl_add_u32 v{t2}, v{t3}, 3, v{t2}")
    for T in range(4):
        a(f"v_xor_b32 v{V_BR+T}, {32*T}, v{t2}")
        a(f"v_add_u32 v{V_BR+T}, s{S_WB}, v{V_BR+T}")
    a(f"v_and_b32 v{t1}, 15, v{L}")
    a(f"v_and_b32 v{t2}, 7, v{L}")
    a(f"v_xor_b32 v{t2}, v{t2}, v{t0}")
    a(f"v_lshlrev_b32 v{t2}, 4, v{t2}")
    a(f"v_lshl_add_u32 v{V_RW}, v{t1}, 8, v{t2}")
    def read_b(c):
        for T in range(4):
            for h in (0, 1):
                a(f"ds_read_b64_tr_b16 {breg(c,T,2,2*h)}, v{V_BR+T} offset:{(c%9)*4096 + h*2048}")
    if opt.get('early_a'):
        for c in range(18): a(load_a(0, c))
    for c in range(9):
        a.wait(lambda t, c=c: t == ("B", c))
        read_b(c)
        if c >= 1:
            a("s_waitcnt lgkmcnt(8)")
            dma_b(c - 1 + 9)
    a("s_waitcnt lgkmcnt(0)")
    dma_b(17)
    if opt.get('sync'): opt['sync'](a)
    if not opt.get('early_a'):
        for c in range(9, 18):
            a.wait(lambda t, c=c: t == ("B", c))
            read_b(c)
        for c in range(18): a(load_a(0, c))
        for c in range(18): a(load_a(1, c))
    else:
        for c in range(9, 18):
            a.wait(lambda t, c=c: t == ("B", c))
            read_b(c)
            a(load_a(1, 2*(c-9))); a(load_a(1, 2*(c-9)+1))
    VG = 224
    a(f"s_lshl_b32 s{S_T1}, s{S_RB}, 9")
    a(f"v_lshlrev_b32 v{t3}, 3, v{t1}")
    a("s_waitcnt lgkmcnt(0)")
    GREG = [240, 242, 246, 252]
    for rt in range(4):
        a((f"buffer_load_dwordx2 {vr(GREG[rt],2)}, v{t3}, {sr(SG)}, s{S_T1} offen offset:{rt*128} {ld}", ("G", rt)))
    a(f"v_add_u32 v{V_RW}, s{S_WB}, v{V_RW}")
    a(f"v_xor_b32 v{249}, 64, v{V_RW}")
    a(f"v_xor_b32 v{250}, 128, v{V_RW}")
    a(f"v_xor_b32 v{244}, 192, v{V_RW}")
    RW = [V_RW, 249, 250, 244]
    def combine(rt):
        out = []
        acc = V_ACC + 32 * (rt & 1)
        out.append(lambda aa, rt=rt: aa.wait(lambda t: t == ("G", rt)))
        for T in range(4):
            for e in range(4): out.append(f"v_mul_f32 v{acc+4*T+e}, v{GREG[rt]}, v{acc+4*T+e}")
            for e in range(4): out.append(f"v_fmac_f32 v{acc+4*T+e}, v{GREG[rt]+1}, v{acc+16+4*T+e}")
            out.append(f"ds_write_b128 v{RW[T]}, {vr(acc+4*T)} offset:{rt*4096}")
        return out
    for rt in range(4):
        acc = V_ACC + 32 * (rt & 1)
        pend = combine(rt - 1) if rt >= 1 else []
        for c in range(18):
            a.wait(lambda t, rt=rt, c=c: t == ("A", rt, c))
            for T in range(4):
                d = acc + (0 if c < 4 else 16) + 4 * T
                first = c == 0 or c == 4
                a(f"v_mfma_f32_16x16x32_bf16 {vr(d)}, {breg(c,T)}, {vr(areg(rt,c))}, {'0' if first else vr(d)}")
                if c >= 3 and pend:
                    a(pend.pop(0))
            if rt + 2 < 4: a(load_a(rt + 2, c))
        assert not pend
    a("s_nop 7")
    a(combine(3))
    a(f"v_lshrrev_b32 v{t3}, 3, v{L}")
    a(f"v_and_b32 v{t2}, 7, v{L}")
    a(f"v_lshlrev_b32 v0, 1, v{t2}")
    a(f"v_xor_b32 v0, v0, v{t3}")
    a(f"v_lshlrev_b32 v0, 4, v0")
    a(f"v_lshl_add_u32 v0, v{t3}, 8, v0")
    a(f"s_lshl_b32 s{S_T0}, s{S_W}, 12")
    a(f"v_add_u32 v0, s{S_T0}, v0")
    a(f"v_xor_b32 v1, 16, v0")
    a(f"v_add_u32 v2, {2*WREG}, v0")
    a(f"v_add_u32 v3, {2*WREG}, v1")
    a(f"v_lshlrev_b32 v4, 4, v{t2}")
    a(f"v_lshl_add_u32 v4, v{t3}, 10, v4")
    a(f"s_lshl_b32 s{S_T0}, s{S_RB}, 16")
    a(f"s_lshl_b32 s{S_T1}, s{S_W}, 14")
    a(f"s_add_u32 s{S_T0}, s{S_T0}, s{S_T1}")
    a(f"s_lshl_b32 s{S_T1}, s{S_CG}, 7")
    a(f"s_add_u32 s{S_T0}, s{S_T0}, s{S_T1}")
    a(f"s_add_u32 s{S_T1}, s{S_T0}, 8192")
    a("s_waitcnt lgkmcnt(0)")
    a("s_barrier")
    R = 96
    for q in (0, 1):
        for w in range(4):
            for e in (0, 1):
                a(f"ds_read_b128 {vr(R + q*32 + w*8 + e*4)}, v{(w>>1)*2 + e} offset:{(w&1)*WREG + q*2048}")
    for q in (0, 1):
        a(f"s_waitcnt lgkmcnt({8 if q == 0 else 0})")
        b = R + q * 32
        for e in range(8): a(f"v_add_f32 v{b+e}, v{b+e}, v{b+8+e}")
        for e in range(8): a(f"v_add_f32 v{b+16+e}, v{b+16+e}, v{b+24+e}")
        for e in range(8): a(f"v_add_f32 v{b+e}, v{b+e}, v{b+16+e}")
        for e in range(4): a(f"v_cvt_pk_bf16_f32 v{b+8+e}, v{b+2*e}, v{b+2*e+1}")
        a((f"buffer_store_dwordx4 {vr(b+8)}, v4, {sr(SOUT)}, s{S_T0 if q == 0 else S_T1} offen", ("O", q)))

def kd(name):
    return f""".amdhsa_kernel {name}
  .amdhsa_next_free_vgpr 512
  .amdhsa_next_free_sgpr 96
  .amdhsa_accum_offset 256
  .amdhsa_group_segment_fixed_size 0
  .amdhsa_kernarg_size 88
  .amdhsa_user_sgpr_count 2
  .amdhsa_user_sgpr_kernarg_segment_ptr 1
  .amdhsa_system_sgpr_workgroup_id_x 1
.end_amdhsa_kernel
"""

def header(launches):
    ref = open(f"cdna_kernels/{NAME}.s.ref").read().splitlines()
    out = [l for l in ref if l.startswith(";") and "@launch" not in l]
    out += launches
    out += ['.amdgcn_target "amdgcn-amd-amdhsa--gfx950"', ".text"]
    return "\n".join(out) + "\n"

def kstart(name):
    return f".globl {name}\n.p2align 8\n.type {name},@function\n{name}:\n"

def gen_2k(extra_empty=0):
    opt = dict(st="", ld="", early_a=True)
    a = Asm()
    common_prologue(a, 256, "L_s1_done")
    code_prefetch(a, 32768)
    a(f"s_cmp_ge_u32 s{S_J}, 21")
    a("s_cbranch_scc1 L_qkv")
    saved = list(a.vm)
    stage1_ffn(a, opt)
    a("s_endpgm")
    a("L_qkv:")
    a.vm = saved
    stage1_qkv(a, opt)
    a("L_s1_done:")
    a("s_endpgm")
    b = Asm()
    common_prologue(b, 256, "L_s2_done")
    code_prefetch(b, 8192)
    stage2(b, opt)
    b("L_s2_done:")
    b("s_endpgm")
    launches = ["; @launch kernel=s1_kernel grid=(256,1,1) block=(256,1,1) lds=155648",
                "; @launch kernel=s2_kernel grid=(256,1,1) block=(256,1,1) lds=147456"]
    for _ in range(extra_empty):
        launches.append("; @launch kernel=e_kernel grid=(256,1,1) block=(256,1,1) lds=0")
    txt = header(launches) + kstart("s1_kernel") + a.text() + "\n" + kstart("s2_kernel") + b.text() + "\n"
    if extra_empty: txt += kstart("e_kernel") + "  s_endpgm\n"
    txt += ".fill 2048, 4, 0xbf800000\n"
    txt += '.section .rodata,"a"\n.p2align 6\n' + kd("s1_kernel") + ".p2align 6\n" + kd("s2_kernel")
    if extra_empty: txt += ".p2align 6\n" + kd("e_kernel")
    return txt

if __name__ == "__main__":
    mode = sys.argv[1] if len(sys.argv) > 1 else "2k"
    out = sys.argv[2] if len(sys.argv) > 2 else f"cdna_kernels/{NAME}.s"
    if mode == "2k": txt = gen_2k()
    elif mode == "2k+e": txt = gen_2k(1)
    open(out, "w").write(txt)
    print("wrote", out, len(txt), "bytes")
```

```python
import sys
NAME = "gated_mix__sliding_local_dilated__glu_gated_glu__prompt"

NKC = 72
WS_FRAG_BYTES = 128 * NKC * 1024
WS_GATE_OFF = WS_FRAG_BYTES
LOG2E = 1.4426950408889634

import struct
def f2u(x): return struct.unpack("<I", struct.pack("<f", x))[0]

class Asm:
    def __init__(self):
        self.lines = []
        self.vm = []
    def __call__(self, s):
        if isinstance(s, (list, tuple)) and not (len(s) == 2 and isinstance(s, tuple)):
            for x in s: self(x)
            return
        if callable(s):
            s(self); return
        if isinstance(s, tuple):
            self.lines.append("  " + s[0]); self.vm.append(s[1])
            assert len(self.vm) <= 63, len(self.vm)
            return
        self.lines.append(("" if s.endswith(":") else "  ") + s)
    def vmcount(self, pred):
        idx = -1
        for i, t in enumerate(self.vm):
            if pred(t): idx = i
        if idx < 0: return None
        n = len(self.vm) - 1 - idx
        self.vm = self.vm[idx + 1:]
        return n
    def wait(self, pred=None, lgkm=None):
        parts = []
        if pred is not None:
            n = self.vmcount(pred)
            if n is not None:
                assert n <= 63, n
                parts.append(f"vmcnt({n})")
        if lgkm is not None: parts.append(f"lgkmcnt({lgkm})")
        if parts: self("s_waitcnt " + " ".join(parts))
    def text(self): return "\n".join(self.lines)

def vr(b, n=4): return f"v[{b}:{b+n-1}]"
def ar(b, n=4): return f"a[{b}:{b+n-1}]"

SX, SW0, SW1, SWS, SWO, SWD, SOUT, SG = 4, 8, 12, 16, 20, 24, 28, 32
P_X, P_WQKV, P_WO, P_BX, P_WG, P_WU, P_WD, P_GW, P_OUT, P_DBG, P_WS = 36, 38, 40, 42, 44, 46, 48, 50, 52, 54, 56
S_W = 60
S_SOFF = 61
S_XCD, S_J = 62, 63
S_T0, S_T1, S_T2, S_T3 = 64, 65, 66, 67
S_WB, S_XB = 68, 69
S_RB, S_CG = 70, 71
S_M0, S_M1, S_M2, S_M3 = 72, 74, 76, 78
S_C0 = 80

def srd(a, d, p, size, off=0):
    if off:
        a(f"s_add_u32 s{d}, s{p}, {off}")
        a(f"s_addc_u32 s{d+1}, s{p+1}, 0")
    else:
        a(f"s_mov_b32 s{d}, s{p}")
        a(f"s_mov_b32 s{d+1}, s{p+1}")
    a(f"s_mov_b32 s{d+2}, {size}")
    a(f"s_mov_b32 s{d+3}, 0x20000")

def sr(d): return f"s[{d}:{d+3}]"

def interleave(a, mfmas, fillers, tail=None, per_gap=2, start=0):
    n = len(mfmas)
    gaps = [[] for _ in range(n)]
    tail = tail or {}
    flat = fillers
    last = n - 3 if tail else n - 1
    g = start
    total = sum(1 for f in flat if f != "brk")
    span = max(1, last - start)
    cnt = 0
    for f in flat:
        if f == "brk":
            g += 1
            continue
        want = start + (cnt * span) // max(total, 1)
        if want > g: g = want
        while g < n - 1 and len(gaps[g]) >= per_gap: g += 1
        assert g <= last, (g, last)
        gaps[g].append(f)
        cnt += 1
    for i, m in enumerate(mfmas):
        a(m)
        for f in gaps[i]: a(f)
        if i in tail:
            for f in tail[i]: a(f)

DIAG = False
S_ST = 86
def stamp(a, i):
    if DIAG: a(f"s_memrealtime s[{S_ST+2*i}:{S_ST+2*i+1}]")
def stamp_flush(a, kidx):
    if not DIAG: return
    a("s_waitcnt vmcnt(0) lgkmcnt(0)")
    a.vm = []
    stamp(a, 7)
    a("s_waitcnt lgkmcnt(0)")
    for i in range(8): a(f"v_mov_b32 v{8+i}, s{S_ST+2*i}")
    srd(a, SX, P_WS, 1 << 20, 16 << 20)
    a(f"s_lshl_b32 s{S_T0}, s2, 7")
    a(f"s_lshl_b32 s{S_T1}, s{S_W}, 5")
    a(f"s_add_u32 s{S_T0}, s{S_T0}, s{S_T1}")
    a(f"s_add_u32 s{S_T0}, s{S_T0}, {kidx*32768}")
    a(f"v_mov_b32 v16, s{S_T0}")
    a("s_mov_b64 exec, 1")
    a(f"buffer_store_dwordx4 v[8:11], v16, {sr(SX)}, 0 offen")
    a(f"buffer_store_dwordx4 v[12:15], v16, {sr(SX)}, 0 offen offset:16")

def common_prologue(a, nwg, done):
    if DIAG:
        for i in range(8): a(f"s_mov_b64 s[{S_ST+2*i}:{S_ST+2*i+1}], 0")
    stamp(a, 0)
    a(f"s_cmp_ge_u32 s2, {nwg}")
    a(f"s_cbranch_scc1 {done}")
    a(f"s_load_dwordx16 s[{P_X}:{P_X+15}], s[0:1], 0")
    a(f"s_load_dwordx4 s[{P_OUT}:{P_OUT+3}], s[0:1], 64")
    a(f"s_load_dwordx2 s[{P_WS}:{P_WS+1}], s[0:1], 80")
    a("v_lshrrev_b32 v250, 6, v0")
    a("v_and_b32 v251, 63, v0")
    a(f"v_readfirstlane_b32 s{S_W}, v250")
    a(f"s_and_b32 s{S_XCD}, s2, 7")
    a(f"s_lshr_b32 s{S_J}, s2, 3")

def code_prefetch(a, nbytes):
    a(f"s_getpc_b64 s[{S_T0}:{S_T1}]")
    a("v_lshlrev_b32 v249, 7, v0")
    for i in range((nbytes + 32767) // 32768):
        a(f"v_cmp_gt_u32 vcc, {min(256, (nbytes - i*32768 + 127)//128)}, v0")
        a(f"s_and_saveexec_b64 s[{S_T2}:{S_T3}], vcc")
        a((f"global_load_dword a255, v249, s[{S_T0}:{S_T1}]", "pf"))
        a(f"s_mov_b64 exec, s[{S_T2}:{S_T3}]")
        a("v_add_u32 v249, 0x8000, v249")

V_W0, V_W1 = 176, 177
V_X = 178
V_WR = 186
V_XR = 190
V_L16 = 196
V_T = 200

def stage1_ffn(a, opt):
    NT = 11
    XBASE, XSLOT, WSLOT = 81920, 24576, 16384
    L = 251
    a(f"s_mul_i32 s{S_T0}, s{S_XCD}, 21")
    a(f"s_add_u32 s{S_T0}, s{S_T0}, s{S_J}")
    a(f"s_mul_i32 s{S_CG}, s{S_T0}, 5462")
    a(f"s_lshr_b32 s{S_CG}, s{S_CG}, 16")
    a(f"s_mul_i32 s{S_T1}, s{S_CG}, 12")
    a(f"s_sub_u32 s{S_RB}, s{S_T0}, s{S_T1}")
    a(f"s_lshl_b32 s{S_WB}, s{S_W}, 12")
    a(f"s_lshl_b32 s{S_XB}, s{S_W}, 10")
    a(f"s_and_b32 s{S_T2}, s{S_W}, 1")
    a(f"s_lshl_b32 s{S_T2}, s{S_T2}, 2")
    t0, t1, t2, t3 = V_T, V_T + 1, V_T + 2, V_T + 3
    a(f"v_lshrrev_b32 v{t0}, 4, v{L}")
    a(f"v_or_b32 v{t1}, s{S_T2}, v{t0}")
    a(f"v_and_b32 v{t2}, 7, v{L}")
    a(f"v_xor_b32 v{t2}, v{t2}, v{t1}")
    a(f"v_lshlrev_b32 v{t2}, 4, v{t2}")
    a(f"v_lshrrev_b32 v{t3}, 3, v{L}")
    a(f"s_mul_i32 s{S_T0}, s{S_RB}, 176")
    a(f"s_lshl_b32 s{S_T1}, s{S_W}, 3")
    a(f"s_add_u32 s{S_T0}, s{S_T0}, s{S_T1}")
    a(f"v_add_u32 v{t3}, s{S_T0}, v{t3}")
    a(f"v_lshl_add_u32 v{V_X}, v{t3}, 10, v{t2}")
    for m in range(1, 6):
        a(f"v_add_u32 v{V_X+m}, {32768*m}, v{V_X}")
    a(f"s_cmp_ge_u32 s{S_W}, 2")
    a(f"s_cselect_b32 s{S_T0}, 0x40000000, 0")
    a(f"v_or_b32 v{V_X+5}, s{S_T0}, v{V_X+5}")
    a(f"v_lshlrev_b32 v{t2}, 1, v{t1}")
    a(f"v_and_b32 v{t3}, 15, v{L}")
    a(f"v_xor_b32 v{t2}, v{t2}, v{t3}")
    a(f"v_lshlrev_b32 v{t2}, 4, v{t2}")
    a(f"v_add_u32 v{t3}, s{S_T1}, v{t0}")
    a(f"v_mul_u32_u24 v{t3}, 3584, v{t3}")
    a(f"s_lshl_b32 s{S_T0}, s{S_CG}, 8")
    a(f"v_add3_u32 v{V_W0}, v{t3}, v{t2}, s{S_T0}")
    a(f"v_add_u32 v{V_W1}, {4*3584}, v{V_W0}")
    a("s_waitcnt lgkmcnt(0)")
    srd(a, SX, P_X, 2048 * 1024)
    srd(a, SW0, P_WG, 512 * 3584)
    srd(a, SW1, P_WU, 512 * 3584)
    srd(a, SWS, P_WS, WS_FRAG_BYTES)

    def dma_w(s):
        out = []
        if s >= 16: return out
        out.append(f"s_mov_b32 s{S_SOFF}, {s*32*3584}")
        for mat in (0, 1):
            for half in (0, 1):
                out.append(f"s_add_u32 m0, s{S_WB}, {(s%5)*WSLOT + mat*2048 + half*1024}")
                out.append("brk")
                out.append((f"buffer_load_dwordx4 v{V_W1 if half else V_W0}, {sr(SW1 if mat else SW0)}, s{S_SOFF} offen lds", ("W", s)))
        return out
    def dma_x(j, ms):
        out = []
        if j >= 8: return out
        for m in ms:
            out.append(f"s_add_u32 m0, s{S_XB}, {XBASE + (j%3)*XSLOT + m*4096 - 128*j}")
            out.append("brk")
            out.append((f"buffer_load_dwordx4 v{V_X+m}, {sr(SX)}, 0 offen offset:{128*j} lds", ("X", j)))
        return out
    def plain(lst):
        for f in lst: a("s_nop 0" if f == "brk" else f)
    plain(dma_x(0, range(6))); plain(dma_w(0)); plain(dma_w(1)); plain(dma_x(1, range(6)))
    plain(dma_w(2)); plain(dma_w(3)); plain(dma_x(2, range(6))); plain(dma_w(4))
    a(f"v_lshrrev_b32 v{t1}, 2, v{L}")
    a(f"v_and_b32 v{t1}, 3, v{t1}")
    a(f"v_and_b32 v{t2}, 1, v{t0}")
    a(f"v_lshl_or_b32 v{t2}, v{t2}, 2, v{t1}")
    a(f"s_lshl_b32 s{S_T0}, s{S_W}, 1")
    a(f"v_xor_b32 v{t2}, s{S_T0}, v{t2}")
    a(f"v_lshlrev_b32 v{t2}, 5, v{t2}")
    a(f"v_lshl_add_u32 v{t2}, v{t0}, 12, v{t2}")
    a(f"v_lshl_add_u32 v{t2}, v{t1}, 8, v{t2}")
    a(f"v_and_b32 v{t3}, 3, v{L}")
    a(f"v_lshl_add_u32 v{V_WR}, v{t3}, 3, v{t2}")
    a(f"v_xor_b32 v{V_WR+1}, 32, v{V_WR}")
    a(f"v_add_u32 v{V_WR+2}, 0x10000, v{V_WR}")
    a(f"v_add_u32 v{V_WR+3}, 0x10000, v{V_WR+1}")
    a(f"v_and_b32 v{t1}, 15, v{L}")
    a(f"v_lshrrev_b32 v{t2}, 1, v{t1}")
    a(f"v_xor_b32 v{t2}, v{t2}, v{t0}")
    a(f"v_lshlrev_b32 v{t2}, 4, v{t2}")
    a(f"v_lshl_add_u32 v{t2}, v{t1}, 7, v{t2}")
    a(f"v_xor_b32 v{t3}, 64, v{t2}")
    for sl in range(3):
        a(f"v_add_u32 v{V_XR+2*sl}, {XBASE + sl*XSLOT}, v{t2}")
        a(f"v_add_u32 v{V_XR+2*sl+1}, {XBASE + sl*XSLOT}, v{t3}")
    a(f"v_lshlrev_b32 v{V_L16}, 4, v{L}")

    def WF(p, c): return p * 16 + c * 4
    def XF(p, t): return 32 + p * 44 + t * 4
    def reads(s):
        out = []
        if s >= 16: return out
        p = s & 1
        sl = s % 5
        for c in range(4):
            mat, T = c >> 1, c & 1
            for h in (0, 1):
                off = sl * WSLOT + mat * 2048 + h * 1024
                reg = V_WR + T
                if off >= 65536: off -= 65536; reg += 2
                out.append(f"ds_read_b64_tr_b16 {ar(WF(p,c)+2*h, 2)}, v{reg} offset:{off}")
        j, kk = s >> 1, s & 1
        for t in range(NT):
            out.append(f"ds_read_b128 {ar(XF(p,t))}, v{V_XR + 2*(j%3) + kk} offset:{t*2048}")
        return out
    def need(s):
        return lambda t: t == ("W", s) or t == ("X", s >> 1)
    stamp(a, 1)
    a.wait(need(0))
    a("s_barrier")
    stamp(a, 2)
    if DIAG: a(f"s_memtime s[{S_ST+10}:{S_ST+11}]")
    if DIAG: a("s_waitcnt lgkmcnt(0)")
    plain(reads(0))
    a.wait(need(1), lgkm=0)
    a("s_barrier")
    for s in range(16):
        p = s & 1
        mf = []
        for t in range(NT):
            for c in range(4):
                d = (t * 4 + c) * 4
                mf.append(f"v_mfma_f32_16x16x32_bf16 {vr(d)}, {ar(WF(p,c))}, {ar(XF(p,t))}, {'0' if s == 0 else vr(d)}")
        rd = reads(s + 1)
        dm = dma_w(s + 5)
        if s >= 1:
            j = (s - 1) // 2 + 3
            dm = dm + dma_x(j, range(0, 3) if (s & 1) else range(3, 6))
        fl = []
        ri = 0
        groups = []
        cur = []
        for f in dm:
            cur.append(f)
            if isinstance(f, tuple): groups.append(cur); cur = []
        per = max(1, (len(rd) + max(len(groups), 1) - 1) // max(len(groups), 1))
        gi = 0
        while ri < len(rd) or gi < len(groups):
            fl += rd[ri:ri + per]; ri += per
            if gi < len(groups): fl += groups[gi]; gi += 1
        tail = {}
        if s < 15:
            tail[len(mf) - 2] = [(lambda aa, s=s: aa.wait(need(s + 2), lgkm=0)), "s_barrier"] if s < 14 else [(lambda aa: aa.wait(None, lgkm=0))]
        interleave(a, mf, fl, tail or {len(mf) - 2: []})
    stamp(a, 3)
    if DIAG: a(f"s_memtime s[{S_ST+12}:{S_ST+13}]")
    a(f"s_mul_i32 s{S_T0}, s{S_RB}, {11*NKC}")
    a(f"s_lshl_b32 s{S_T1}, s{S_CG}, 2")
    a(f"s_add_u32 s{S_T0}, s{S_T0}, s{S_T1}")
    a(f"s_add_u32 s{S_T0}, s{S_T0}, s{S_W}")
    a(f"s_add_u32 s{S_T0}, s{S_T0}, 16")
    a(f"s_lshl_b32 s{S_SOFF}, s{S_T0}, 10")
    a(f"s_mov_b32 s{S_C0}, {f2u(-LOG2E)}")
    a("s_nop 4")
    for t in range(NT):
        g = t * 16; u = g + 8
        o = V_T + 4 * (t & 1)
        for e in range(8): a(f"v_mul_f32 v{g+e}, s{S_C0}, v{g+e}")
        for e in range(8): a(f"v_exp_f32 v{g+e}, v{g+e}")
        for e in range(8): a(f"v_add_f32 v{g+e}, 1.0, v{g+e}")
        for e in range(8): a(f"v_rcp_f32 v{g+e}, v{g+e}")
        for e in range(8): a(f"v_mul_f32 v{g+e}, v{g+e}, v{u+e}")
        for e in range(4): a(f"v_cvt_pk_bf16_f32 v{o+e}, v{g+2*e}, v{g+2*e+1}")
        a((f"buffer_store_dwordx4 {vr(o)}, v{V_L16}, {sr(SWS)}, s{S_SOFF} offen {opt['st']}", ("ST", t)))
        a(f"s_add_u32 s{S_SOFF}, s{S_SOFF}, {NKC*1024}")

def stage1_qkv(a, opt):
    XBASE, XSLOT, WSLOT, GWBASE = 61440, 28672, 12288, 147456
    L = 251
    V_WQ = 176
    V_GX = 197
    V_GW = 199
    t0, t1, t2, t3 = V_T, V_T + 1, V_T + 2, V_T + 3
    a(f"s_sub_u32 s{S_RB}, s{S_J}, 21")
    a(f"s_mov_b32 s{S_CG}, s{S_XCD}")
    a(f"s_mul_i32 s{S_WB}, s{S_W}, 3072")
    a(f"s_lshl_b32 s{S_XB}, s{S_W}, 10")
    a(f"s_and_b32 s{S_T2}, s{S_W}, 1")
    a(f"s_lshl_b32 s{S_T3}, s{S_T2}, 2")
    a(f"v_lshrrev_b32 v{t0}, 4, v{L}")
    a(f"v_or_b32 v{t1}, s{S_T3}, v{t0}")
    a(f"v_and_b32 v{t2}, 7, v{L}")
    a(f"v_xor_b32 v{t2}, v{t2}, v{t1}")
    a(f"v_lshlrev_b32 v{t2}, 4, v{t2}")
    a(f"v_lshrrev_b32 v{t3}, 3, v{L}")
    a(f"s_mul_i32 s{S_T0}, s{S_RB}, 192")
    a(f"s_lshl_b32 s{S_T1}, s{S_W}, 3")
    a(f"s_add_u32 s{S_T0}, s{S_T0}, s{S_T1}")
    a(f"s_sub_u32 s{S_T0}, s{S_T0}, 16")
    a(f"v_add_u32 v{t3}, s{S_T0}, v{t3}")
    a(f"v_lshl_add_u32 v{V_X}, v{t3}, 10, v{t2}")
    for m in range(1, 7):
        a(f"v_add_u32 v{V_X+m}, {32768*m}, v{V_X}")
    a(f"s_cmp_ge_u32 s{S_W}, 2")
    a(f"s_cselect_b32 s{S_T0}, 0x40000000, 0")
    a(f"v_or_b32 v{V_X+6}, s{S_T0}, v{V_X+6}")
    a(f"v_and_b32 v{t1}, 1, v{t0}")
    a(f"v_lshlrev_b32 v{t1}, 1, v{t1}")
    a(f"v_or_b32 v{t1}, s{S_T3}, v{t1}")
    a(f"v_and_b32 v{t2}, 7, v{L}")
    a(f"v_xor_b32 v{t2}, v{t2}, v{t1}")
    a(f"v_lshlrev_b32 v{t2}, 4, v{t2}")
    a(f"v_lshrrev_b32 v{t3}, 3, v{L}")
    a(f"v_add_u32 v{t3}, s{S_T1}, v{t3}")
    a(f"v_mul_u32_u24 v{t3}, 3072, v{t3}")
    a(f"s_lshl_b32 s{S_T0}, s{S_CG}, 7")
    a(f"v_add3_u32 v{V_WQ}, v{t3}, v{t2}, s{S_T0}")
    a(f"v_lshlrev_b32 v{V_L16}, 4, v{L}")
    a("s_waitcnt lgkmcnt(0)")
    srd(a, SX, P_X, 2048 * 1024)
    srd(a, SW0, P_WQKV, 512 * 3072)
    srd(a, SW1, P_GW, 1024)
    srd(a, SWS, P_WS, WS_FRAG_BYTES)
    srd(a, SG, P_WS, 2048 * 8, WS_GATE_OFF)

    def dma_w(s):
        out = []
        if s >= 16: return out
        out.append(f"s_mov_b32 s{S_SOFF}, {s*32*3072}")
        out.append(f"s_add_u32 m0, s{S_WB}, {(s%5)*WSLOT}")
        out.append("brk")
        for mat in range(3):
            out.append((f"buffer_load_dwordx4 v{V_WQ}, {sr(SW0)}, s{S_SOFF} offen offset:{mat*1024} lds", ("W", s)))
        return out
    def dma_x(j, ms):
        out = []
        if j >= 8: return out
        for m in ms:
            out.append(f"s_add_u32 m0, s{S_XB}, {XBASE + (j%3)*XSLOT + m*4096 - 128*j}")
            out.append("brk")
            out.append((f"buffer_load_dwordx4 v{V_X+m}, {sr(SX)}, 0 offen offset:{128*j} lds", ("X", j)))
        return out
    def plain(lst):
        for f in lst: a("s_nop 0" if f == "brk" else f)
    a(f"s_mov_b32 m0, {GWBASE}")
    a("s_nop 0")
    a((f"buffer_load_dwordx4 v{V_L16}, {sr(SW1)}, 0 offen lds", ("X", 0)))
    plain(dma_x(0, range(7))); plain(dma_w(0)); plain(dma_w(1)); plain(dma_x(1, range(7)))
    plain(dma_w(2)); plain(dma_w(3)); plain(dma_x(2, range(7))); plain(dma_w(4))
    a(f"v_lshrrev_b32 v{t1}, 2, v{L}")
    a(f"v_and_b32 v{t1}, 3, v{t1}")
    a(f"v_and_b32 v{t2}, 1, v{t0}")
    a(f"v_lshlrev_b32 v{t2}, 1, v{t2}")
    a(f"v_lshrrev_b32 v{t3}, 1, v{t1}")
    a(f"v_or_b32 v{t2}, v{t2}, v{t3}")
    a(f"s_lshl_b32 s{S_T0}, s{S_T2}, 1")
    a(f"v_xor_b32 v{t2}, s{S_T0}, v{t2}")
    a(f"v_lshlrev_b32 v{t2}, 5, v{t2}")
    a(f"v_mul_u32_u24 v{t3}, 3072, v{t0}")
    a(f"v_add_u32 v{t2}, v{t2}, v{t3}")
    a(f"v_lshl_add_u32 v{t2}, v{t1}, 7, v{t2}")
    a(f"v_and_b32 v{t3}, 3, v{L}")
    a(f"v_lshl_add_u32 v{V_WR}, v{t3}, 3, v{t2}")
    a(f"v_xor_b32 v{V_WR+1}, 32, v{V_WR}")
    a(f"v_and_b32 v{t1}, 15, v{L}")
    a(f"v_lshrrev_b32 v{t2}, 1, v{t1}")
    a(f"v_xor_b32 v{t2}, v{t2}, v{t0}")
    a(f"v_lshlrev_b32 v{t2}, 4, v{t2}")
    a(f"v_lshl_add_u32 v{t2}, v{t1}, 7, v{t2}")
    a(f"s_lshl_b32 s{S_T0}, s{S_CG}, 2")
    a(f"s_add_u32 s{S_T0}, s{S_T0}, s{S_W}")
    a(f"s_min_u32 s{S_T0}, s{S_T0}, 11")
    a(f"s_add_u32 s{S_T0}, s{S_T0}, 1")
    a(f"s_lshl_b32 s{S_T0}, s{S_T0}, 11")
    a(f"s_add_u32 s{S_T0}, s{S_T0}, {XBASE}")
    a(f"v_add_u32 v{V_GX}, s{S_T0}, v{t2}")
    a(f"v_xor_b32 v{V_GX+1}, 64, v{V_GX}")
    a(f"s_lshr_b32 s{S_T0}, s{S_W}, 1")
    a(f"s_mul_i32 s{S_T0}, s{S_T0}, {6*2048}")
    a(f"v_add_u32 v{t2}, s{S_T0}, v{t2}")
    a(f"v_xor_b32 v{t3}, 64, v{t2}")
    for sl in range(3):
        a(f"v_add_u32 v{V_XR+2*sl}, {XBASE + sl*XSLOT}, v{t2}")
        a(f"v_add_u32 v{V_XR+2*sl+1}, {XBASE + sl*XSLOT}, v{t3}")
    a(f"v_lshlrev_b32 v{V_GW}, 4, v{t0}")
    a(f"v_add_u32 v{V_GW}, {GWBASE}, v{V_GW}")

    def Q(h, t): return (h * 6 + (t - 1)) * 4
    def K(h, t): return 48 + (h * 7 + t) * 4
    def V(h, t): return 104 + (h * 7 + t) * 4
    GA = 160
    def WF(p, mat, h): return p * 24 + (mat * 2 + h) * 4
    def XF(p, t): return 48 + p * 28 + t * 4
    def GX(p): return 104 + p * 8
    def GW(p): return 108 + p * 8
    def reads(s):
        out = []
        if s >= 16: return out
        p = s & 1; sl = s % 5
        for mat in range(3):
            for hh in (0, 1):
                for h in (0, 1):
                    off = sl * WSLOT + mat * 1024 + h * 512
                    out.append(f"ds_read_b64_tr_b16 {ar(WF(p,mat,hh)+2*h, 2)}, v{V_WR+hh} offset:{off}")
        j, kk = s >> 1, s & 1
        for t in range(7):
            out.append(f"ds_read_b128 {ar(XF(p,t))}, v{V_XR + 2*(j%3) + kk} offset:{t*2048}")
        out.append(f"ds_read_b128 {ar(GX(p))}, v{V_GX+kk} offset:{(j%3)*XSLOT}")
        out.append(f"ds_read_b128 {ar(GW(p))}, v{V_GW} offset:{s*64}")
        return out
    def need(s):
        return lambda t: t == ("W", s) or t == ("X", s >> 1)
    stamp(a, 1)
    a.wait(need(0))
    a("s_barrier")
    stamp(a, 2)
    if DIAG: a(f"s_memtime s[{S_ST+10}:{S_ST+11}]")
    if DIAG: a("s_waitcnt lgkmcnt(0)")
    plain(reads(0))
    a.wait(need(1), lgkm=0)
    a("s_barrier")
    for s in range(16):
        p = s & 1
        mf = []
        def M(d, A, B): mf.append(f"v_mfma_f32_16x16x32_bf16 {vr(d)}, {ar(A)}, {ar(B)}, {'0' if s == 0 else vr(d)}")
        M(GA, GW(p), GX(p))
        for t in range(7):
            for hh in (0, 1):
                if t >= 1: M(Q(hh, t), WF(p, 0, hh), XF(p, t))
                M(K(hh, t), WF(p, 1, hh), XF(p, t))
                M(V(hh, t), XF(p, t), WF(p, 2, hh))
        rd = reads(s + 1)
        dm = dma_w(s + 5)
        if s >= 1:
            j = (s - 1) // 2 + 3
            dm = dm + dma_x(j, range(0, 4) if (s & 1) else range(4, 7))
        groups = []; cur = []
        for f in dm:
            cur.append(f)
            if isinstance(f, tuple): groups.append(cur); cur = []
        per = max(1, (len(rd) + max(len(groups), 1) - 1) // max(len(groups), 1))
        fl = []; ri = 0; gi = 0
        while ri < len(rd) or gi < len(groups):
            fl += rd[ri:ri + per]; ri += per
            if gi < len(groups): fl += groups[gi]; gi += 1
        tail = {}
        if s < 15:
            tail[len(mf) - 2] = [(lambda aa, s=s: aa.wait(need(s + 2), lgkm=0)), "s_barrier"] if s < 14 else [(lambda aa: aa.wait(None, lgkm=0))]
        interleave(a, mf, fl, tail or {len(mf) - 2: []})

    stamp(a, 3)
    if DIAG: a(f"s_memtime s[{S_ST+12}:{S_ST+13}]")
    SELY, SELP = 176, 178
    j_, g_, par, d1 = t0, t1, t2, t3
    a(f"v_and_b32 v{j_}, 15, v{L}")
    a(f"v_lshrrev_b32 v{g_}, 4, v{L}")
    a(f"v_and_b32 v{par}, 1, v{j_}")
    a(f"v_lshlrev_b32 v{g_}, 2, v{g_}")
    a(f"v_sub_u32 v{d1}, v{j_}, v{g_}")
    a(f"v_sub_u32 v{d1}, v{d1}, v{par}")
    a(f"v_cmp_le_i32 s[{S_M0}:{S_M0+1}], 0, v{d1}")
    a(f"v_cmp_le_i32 s[{S_M1}:{S_M1+1}], 2, v{d1}")
    a(f"v_cmp_eq_u32 vcc, 1, v{par}")
    t4, t5 = V_T + 4, V_T + 5
    a(f"v_mov_b32 v{t4}, 0x01000c0c")
    a(f"v_mov_b32 v{t5}, 0x03020c0c")
    a(f"v_cndmask_b32 v{t4}, v{t4}, v{t5}, vcc")
    a(f"v_add_u32 v{t5}, 0x04040000, v{t4}")
    a(f"v_cndmask_b32 v{SELY}, v{t4}, v{t5}, s[{S_M0}:{S_M0+1}]")
    a(f"v_cndmask_b32 v{SELY+1}, v{t4}, v{t5}, s[{S_M1}:{S_M1+1}]")
    zero = V_T + 6
    a(f"v_mov_b32 v{zero}, 0x0c0c0c0c")
    for u in (0, 1):
        lo = 0x0c0c0000 | ((2*u+1) << 8) | (2*u)
        hi = 0x00000c0c | ((2*u+1) << 24) | ((2*u) << 16)
        a(f"v_mov_b32 v{t4}, {lo}")
        a(f"v_mov_b32 v{t5}, {hi}")
        a(f"v_cndmask_b32 v{t4}, v{t4}, v{t5}, vcc")
        M_ = S_M0 if u == 0 else S_M1
        a(f"v_cndmask_b32 v{SELP+u}, v{t4}, v{zero}, s[{M_}:{M_+1}]")
        a(f"v_cndmask_b32 v{SELP+2+u}, v{zero}, v{t4}, s[{M_}:{M_+1}]")
    a(f"s_lshr_b32 s{S_T0}, s{S_W}, 1")
    a(f"s_or_b32 s{S_T0}, s{S_T0}, s{S_RB}")
    a(f"s_not_b64 s[{S_M2}:{S_M2+1}], s[{S_M0}:{S_M0+1}]")
    a(f"s_not_b64 s[{S_M3}:{S_M3+1}], s[{S_M1}:{S_M1+1}]")
    a(f"s_cmp_eq_u32 s{S_T0}, 0")
    a(f"s_cselect_b64 s[{S_M2}:{S_M2+1}], s[{S_M2}:{S_M2+1}], 0")
    a(f"s_cselect_b64 s[{S_M3}:{S_M3+1}], s[{S_M3}:{S_M3+1}], 0")
    NEG = 182
    a(f"v_mov_b32 v{NEG}, {f2u(-4e9)}")
    a(f"s_mov_b32 s{S_C0}, {f2u(0.25*LOG2E)}")
    a(f"s_mov_b32 s{S_C0+1}, {f2u(-LOG2E)}")
    a(f"v_cvt_pk_bf16_f32 v{t4}, v{GA}, v{GA}")
    a(f"v_and_b32 v{t4}, 0xffff0000, v{t4}")
    a(f"v_mul_f32 v{t4}, s{S_C0+1}, v{t4}")
    a(f"v_exp_f32 v{t4}, v{t4}")
    a("s_nop 0")
    a(f"v_add_f32 v{t4}, 1.0, v{t4}")
    a(f"v_rcp_f32 v{t4}, v{t4}")
    a("s_nop 0")
    a(f"v_cvt_pk_bf16_f32 v{t4}, v{t4}, v{t4}")
    a(f"v_and_b32 v{t4}, 0xffff0000, v{t4}")
    a(f"v_sub_f32 v{t5}, 1.0, v{t4}")
    a(f"v_cvt_pk_bf16_f32 v{t5}, v{t5}, v{t5}")
    a(f"v_and_b32 v{t5}, 0xffff0000, v{t5}")
    a(f"s_lshl_b32 s{S_T0}, s{S_CG}, 2")
    a(f"s_add_u32 s{S_T0}, s{S_T0}, s{S_W}")
    a(f"s_mul_i32 s{S_T1}, s{S_RB}, 12")
    a(f"s_add_u32 s{S_T1}, s{S_T1}, s{S_T0}")
    a(f"s_lshl_b32 s{S_T1}, s{S_T1}, 7")
    a(f"s_cmp_ge_u32 s{S_T0}, 12")
    a(f"s_cselect_b32 s{S_T1}, 0x40000000, s{S_T1}")
    a(f"v_lshlrev_b32 v{g_}, 16, v{g_}")
    a(f"v_lshl_add_u32 v{g_}, v{j_}, 3, v{g_}")
    a(f"v_add_u32 v{g_}, s{S_T1}, v{g_}")
    a((f"buffer_store_dwordx2 {vr(t4,2)}, v{g_}, {sr(SG)}, 0 offen {opt['st']}", ("ST", -1)))
    VP = 208
    for hh in (0, 1):
        for t in range(7):
            if t >= 1:
                q = Q(hh, t)
                a(f"v_cvt_pk_bf16_f32 v{q}, v{q}, v{q+1}")
                a(f"v_cvt_pk_bf16_f32 v{q+1}, v{q+2}, v{q+3}")
            k = K(hh, t)
            a(f"v_cvt_pk_bf16_f32 v{k}, v{k}, v{k+1}")
            a(f"v_cvt_pk_bf16_f32 v{k+1}, v{k+2}, v{k+3}")
            v = V(hh, t)
            a(f"v_cvt_pk_bf16_f32 v{VP+hh*14+2*t}, v{v}, v{v+1}")
            a(f"v_cvt_pk_bf16_f32 v{VP+hh*14+2*t+1}, v{v+2}, v{v+3}")
    a(f"s_lshr_b32 s{S_T0}, s{S_W}, 1")
    a(f"s_mul_i32 s{S_T0}, s{S_T0}, 6")
    a(f"s_mul_i32 s{S_T1}, s{S_RB}, 12")
    a(f"s_add_u32 s{S_T0}, s{S_T0}, s{S_T1}")
    a(f"s_mul_i32 s{S_T0}, s{S_T0}, {NKC}")
    a(f"s_lshl_b32 s{S_T1}, s{S_CG}, 1")
    a(f"s_add_u32 s{S_T0}, s{S_T0}, s{S_T1}")
    a(f"s_and_b32 s{S_T1}, s{S_W}, 1")
    a(f"s_add_u32 s{S_T0}, s{S_T0}, s{S_T1}")
    a(f"s_lshl_b32 s{S_SOFF}, s{S_T0}, 10")
    OUT = 236
    for half in (0, 1):
        units = [(t, hh) for t in range(1 + 3 * half, 4 + 3 * half) for hh in (0, 1)]
        def S(n): return 104 + 8 * n
        for n, (t, hh) in enumerate(units):
            a(f"v_mfma_f32_16x16x16_bf16 {vr(S(n))}, {vr(K(hh,t-1),2)}, {vr(Q(hh,t),2)}, 0")
            a(f"v_mfma_f32_16x16x16_bf16 {vr(S(n)+4)}, {vr(K(hh,t),2)}, {vr(Q(hh,t),2)}, 0")
        a("s_nop 7")
        U = range(6)
        for n in U:
            s = S(n)
            a(f"v_cvt_pk_bf16_f32 v{s}, v{s}, v{s+1}")
            a(f"v_cvt_pk_bf16_f32 v{s+1}, v{s+2}, v{s+3}")
            a(f"v_cvt_pk_bf16_f32 v{s+4}, v{s+4}, v{s+5}")
            a(f"v_cvt_pk_bf16_f32 v{s+5}, v{s+6}, v{s+7}")
            a(f"v_perm_b32 v{s+2}, v{s+4}, v{s}, v{SELY}")
            a(f"v_perm_b32 v{s+3}, v{s+5}, v{s+1}, v{SELY+1}")
            if units[n][0] == 1:
                a(f"v_cndmask_b32 v{s+2}, v{s+2}, v{NEG}, s[{S_M2}:{S_M2+1}]")
                a(f"v_cndmask_b32 v{s+3}, v{s+3}, v{NEG}, s[{S_M3}:{S_M3+1}]")
        def allreduce(op):
            for swap in ("v_permlane16_swap_b32", "v_permlane32_swap_b32"):
                for n in U: a(f"v_mov_b32 v{S(n)+1}, v{S(n)}")
                a("s_nop 1")
                for n in U: a(f"{swap} v{S(n)}, v{S(n)+1}")
                a("s_nop 1")
                for n in U: a(f"{op} v{S(n)}, v{S(n)}, v{S(n)+1}")
        for n in U: a(f"v_max_f32 v{S(n)}, v{S(n)+2}, v{S(n)+3}")
        allreduce("v_max_f32")
        for n in U:
            a(f"v_sub_f32 v{S(n)+2}, v{S(n)+2}, v{S(n)}")
            a(f"v_sub_f32 v{S(n)+3}, v{S(n)+3}, v{S(n)}")
        for n in U:
            a(f"v_mul_f32 v{S(n)+2}, s{S_C0}, v{S(n)+2}")
            a(f"v_mul_f32 v{S(n)+3}, s{S_C0}, v{S(n)+3}")
        for n in U:
            a(f"v_exp_f32 v{S(n)+2}, v{S(n)+2}")
            a(f"v_exp_f32 v{S(n)+3}, v{S(n)+3}")
        a("s_nop 0")
        for n in U: a(f"v_add_f32 v{S(n)}, v{S(n)+2}, v{S(n)+3}")
        allreduce("v_add_f32")
        for n in U: a(f"v_rcp_f32 v{S(n)}, v{S(n)}")
        a("s_nop 0")
        for n in U:
            a(f"v_mul_f32 v{S(n)+2}, v{S(n)+2}, v{S(n)}")
            a(f"v_mul_f32 v{S(n)+3}, v{S(n)+3}, v{S(n)}")
        for n in U: a(f"v_cvt_pk_bf16_f32 v{S(n)}, v{S(n)+2}, v{S(n)+3}")
        for n in U:
            for q in range(4):
                a(f"v_perm_b32 v{S(n)+4+q}, v{S(n)}, v{S(n)}, v{SELP+q}")
        a("s_nop 1")
        for n, (t, hh) in enumerate(units):
            a(f"v_mfma_f32_16x16x32_bf16 {vr(S(n))}, {vr(VP+hh*14+2*(t-1))}, {vr(S(n)+4)}, 0")
        a("s_nop 7")
        for n, (t, hh) in enumerate(units):
            o = OUT + 4 * (n >> 1) + 2 * hh
            a(f"v_cvt_pk_bf16_f32 v{o}, v{S(n)}, v{S(n)+1}")
            a(f"v_cvt_pk_bf16_f32 v{o+1}, v{S(n)+2}, v{S(n)+3}")
            if hh == 1:
                a((f"buffer_store_dwordx4 {vr(OUT + 4*(n>>1))}, v{V_L16}, {sr(SWS)}, s{S_SOFF} offen {opt['st']}", ("ST", t)))
                a(f"s_add_u32 s{S_SOFF}, s{S_SOFF}, {NKC*1024}")
        if half == 0: a("s_nop 1")

def stage2(a, opt):
    L = 251
    WREG = 36864
    V_B = 0
    V_ACC = 32
    V_A = 96
    V_BD, V_BR, V_L16b, V_G, V_RW = 240, 241, 245, 246, 248
    t0, t1, t2, t3 = 252, 253, 254, 255
    ld = opt['ld']
    a(f"s_lshl_b32 s{S_RB}, s{S_XCD}, 2")
    a(f"s_lshr_b32 s{S_T0}, s{S_J}, 3")
    a(f"s_add_u32 s{S_RB}, s{S_RB}, s{S_T0}")
    a(f"s_and_b32 s{S_CG}, s{S_J}, 7")
    a(f"s_mul_i32 s{S_WB}, s{S_W}, {WREG}")
    a(f"v_lshrrev_b32 v{t0}, 4, v{L}")
    a(f"v_lshlrev_b32 v{t1}, 1, v{t0}")
    a(f"v_and_b32 v{t2}, 7, v{L}")
    a(f"v_xor_b32 v{t2}, v{t2}, v{t1}")
    a(f"v_lshlrev_b32 v{t2}, 4, v{t2}")
    a(f"v_lshrrev_b32 v{t3}, 3, v{L}")
    a(f"v_lshl_add_u32 v{t2}, v{t3}, 10, v{t2}")
    a(f"s_lshl_b32 s{S_T0}, s{S_CG}, 7")
    a(f"v_add_u32 v{V_BD}, s{S_T0}, v{t2}")
    a(f"v_lshlrev_b32 v{V_L16b}, 4, v{L}")
    a("s_waitcnt lgkmcnt(0)")
    srd(a, SWO, P_WO, 512 * 1024)
    srd(a, SWD, P_WD, 1792 * 1024)
    srd(a, SWS, P_WS, WS_FRAG_BYTES)
    srd(a, SG, P_WS, 2048 * 8, WS_GATE_OFF)
    srd(a, SOUT, P_OUT, 2048 * 1024)
    S_BO, S_BH, S_AO, S_AH = 82, 83, 84, 85
    a(f"s_mul_i32 s{S_BO}, s{S_W}, {4*32*1024}")
    a(f"s_mul_i32 s{S_BH}, s{S_W}, {14*32*1024}")
    a(f"s_mul_i32 s{S_T0}, s{S_RB}, {4*NKC*1024}")
    a(f"s_lshl_b32 s{S_AO}, s{S_W}, 12")
    a(f"s_add_u32 s{S_AO}, s{S_AO}, s{S_T0}")
    a(f"s_mul_i32 s{S_AH}, s{S_W}, {14*1024}")
    a(f"s_add_u32 s{S_AH}, s{S_AH}, s{S_T0}")
    a(f"s_add_u32 s{S_AH}, s{S_AH}, {16*1024}")
    def dma_b(c):
        for n in range(4):
            if c < 4: a(f"s_add_u32 s{S_SOFF}, s{S_BO}, {(c*32 + n*8)*1024}")
            else: a(f"s_add_u32 s{S_SOFF}, s{S_BH}, {((c-4)*32 + n*8)*1024}")
            a(f"s_add_u32 m0, s{S_WB}, {(c%9)*4096 + n*1024}")
            a("s_nop 0")
            a((f"buffer_load_dwordx4 v{V_BD}, {sr(SWO if c < 4 else SWD)}, s{S_SOFF} offen lds", ("B", c)))
    def breg(c, T, n=4, o=0):
        if c < 16: return ar(c * 16 + T * 4 + o, n)
        return vr(V_B + (c - 16) * 16 + T * 4 + o, n)
    def areg(rt, c): return V_A + ((rt * 18 + c) % 36) * 4
    def load_a(rt, c):
        out = []
        base = S_AO if c < 4 else S_AH
        cc = c if c < 4 else c - 4
        q, r = divmod(cc, 4)
        if r == 0: out.append(f"s_add_u32 s{S_SOFF}, s{base}, {rt*NKC*1024 + q*4096}")
        out.append((f"buffer_load_dwordx4 {vr(areg(rt,c))}, v{V_L16b}, {sr(SWS)}, s{S_SOFF} offen offset:{r*1024} {ld}", ("A", rt, c)))
        return out
    for c in range(9): dma_b(c)
    a(f"v_lshrrev_b32 v{t1}, 2, v{L}")
    a(f"v_lshrrev_b32 v{t2}, 1, v{t1}")
    a(f"v_and_b32 v{t2}, 3, v{t2}")
    a(f"v_lshlrev_b32 v{t2}, 5, v{t2}")
    a(f"v_lshl_add_u32 v{t2}, v{t1}, 7, v{t2}")
    a(f"v_and_b32 v{t3}, 3, v{L}")
    a(f"v_lshl_add_u32 v{t2}, v{t3}, 3, v{t2}")
    for T in range(4):
        a(f"v_xor_b32 v{V_BR+T}, {32*T}, v{t2}")
        a(f"v_add_u32 v{V_BR+T}, s{S_WB}, v{V_BR+T}")
    a(f"v_and_b32 v{t1}, 15, v{L}")
    a(f"v_and_b32 v{t2}, 7, v{L}")
    a(f"v_xor_b32 v{t2}, v{t2}, v{t0}")
    a(f"v_lshlrev_b32 v{t2}, 4, v{t2}")
    a(f"v_lshl_add_u32 v{V_RW}, v{t1}, 8, v{t2}")
    def read_b(c):
        for T in range(4):
            for h in (0, 1):
                a(f"ds_read_b64_tr_b16 {breg(c,T,2,2*h)}, v{V_BR+T} offset:{(c%9)*4096 + h*2048}")
    if opt.get('early_a'):
        for c in range(18): a(load_a(0, c))
    stamp(a, 1)
    for c in range(9):
        a.wait(lambda t, c=c: t == ("B", c))
        if c == 0:
            stamp(a, 2)
            if DIAG: a("s_waitcnt lgkmcnt(0)")
        read_b(c)
        if c >= 1:
            a("s_waitcnt lgkmcnt(8)")
            dma_b(c - 1 + 9)
    a("s_waitcnt lgkmcnt(0)")
    dma_b(17)
    if opt.get('sync'): opt['sync'](a)
    if not opt.get('early_a'):
        for c in range(9, 18):
            a.wait(lambda t, c=c: t == ("B", c))
            read_b(c)
        for c in range(18): a(load_a(0, c))
        for c in range(18): a(load_a(1, c))
    else:
        for c in range(9, 18):
            a.wait(lambda t, c=c: t == ("B", c))
            read_b(c)
            a(load_a(1, 2*(c-9))); a(load_a(1, 2*(c-9)+1))
    VG = 224
    a(f"s_lshl_b32 s{S_T1}, s{S_RB}, 9")
    a(f"v_lshlrev_b32 v{t3}, 3, v{t1}")
    a("s_waitcnt lgkmcnt(0)")
    stamp(a, 3)
    GREG = [240, 242, 246, 252]
    for rt in range(4):
        a((f"buffer_load_dwordx2 {vr(GREG[rt],2)}, v{t3}, {sr(SG)}, s{S_T1} offen offset:{rt*128} {ld}", ("G", rt)))
    a(f"v_add_u32 v{V_RW}, s{S_WB}, v{V_RW}")
    a(f"v_xor_b32 v{249}, 64, v{V_RW}")
    a(f"v_xor_b32 v{250}, 128, v{V_RW}")
    a(f"v_xor_b32 v{244}, 192, v{V_RW}")
    RW = [V_RW, 249, 250, 244]
    def combine(rt):
        out = []
        acc = V_ACC + 32 * (rt & 1)
        out.append(lambda aa, rt=rt: aa.wait(lambda t: t == ("G", rt)))
        for T in range(4):
            for e in range(4): out.append(f"v_mul_f32 v{acc+4*T+e}, v{GREG[rt]}, v{acc+4*T+e}")
            for e in range(4): out.append(f"v_fmac_f32 v{acc+4*T+e}, v{GREG[rt]+1}, v{acc+16+4*T+e}")
            out.append(f"ds_write_b128 v{RW[T]}, {vr(acc+4*T)} offset:{rt*4096}")
        return out
    for rt in range(4):
        acc = V_ACC + 32 * (rt & 1)
        pend = combine(rt - 1) if rt >= 1 else []
        for c in range(18):
            a.wait(lambda t, rt=rt, c=c: t == ("A", rt, c))
            for T in range(4):
                d = acc + (0 if c < 4 else 16) + 4 * T
                first = c == 0 or c == 4
                a(f"v_mfma_f32_16x16x32_bf16 {vr(d)}, {breg(c,T)}, {vr(areg(rt,c))}, {'0' if first else vr(d)}")
                if c >= 3 and pend:
                    a(pend.pop(0))
            if rt + 2 < 4: a(load_a(rt + 2, c))
        assert not pend
    stamp(a, 4)
    a("s_nop 7")
    a(combine(3))
    a(f"v_lshrrev_b32 v{t3}, 3, v{L}")
    a(f"v_and_b32 v{t2}, 7, v{L}")
    a(f"v_lshlrev_b32 v0, 1, v{t2}")
    a(f"v_xor_b32 v0, v0, v{t3}")
    a(f"v_lshlrev_b32 v0, 4, v0")
    a(f"v_lshl_add_u32 v0, v{t3}, 8, v0")
    a(f"s_lshl_b32 s{S_T0}, s{S_W}, 12")
    a(f"v_add_u32 v0, s{S_T0}, v0")
    a(f"v_xor_b32 v1, 16, v0")
    a(f"v_add_u32 v2, {2*WREG}, v0")
    a(f"v_add_u32 v3, {2*WREG}, v1")
    a(f"v_lshlrev_b32 v4, 4, v{t2}")
    a(f"v_lshl_add_u32 v4, v{t3}, 10, v4")
    a(f"s_lshl_b32 s{S_T0}, s{S_RB}, 16")
    a(f"s_lshl_b32 s{S_T1}, s{S_W}, 14")
    a(f"s_add_u32 s{S_T0}, s{S_T0}, s{S_T1}")
    a(f"s_lshl_b32 s{S_T1}, s{S_CG}, 7")
    a(f"s_add_u32 s{S_T0}, s{S_T0}, s{S_T1}")
    a(f"s_add_u32 s{S_T1}, s{S_T0}, 8192")
    a("s_waitcnt lgkmcnt(0)")
    a("s_barrier")
    R = 96
    for q in (0, 1):
        for w in range(4):
            for e in (0, 1):
                a(f"ds_read_b128 {vr(R + q*32 + w*8 + e*4)}, v{(w>>1)*2 + e} offset:{(w&1)*WREG + q*2048}")
    for q in (0, 1):
        a(f"s_waitcnt lgkmcnt({8 if q == 0 else 0})")
        b = R + q * 32
        for e in range(8): a(f"v_add_f32 v{b+e}, v{b+e}, v{b+8+e}")
        for e in range(8): a(f"v_add_f32 v{b+16+e}, v{b+16+e}, v{b+24+e}")
        for e in range(8): a(f"v_add_f32 v{b+e}, v{b+e}, v{b+16+e}")
        for e in range(4): a(f"v_cvt_pk_bf16_f32 v{b+8+e}, v{b+2*e}, v{b+2*e+1}")
        a((f"buffer_store_dwordx4 {vr(b+8)}, v4, {sr(SOUT)}, s{S_T0 if q == 0 else S_T1} offen", ("O", q)))

def kd(name):
    return f""".amdhsa_kernel {name}
  .amdhsa_next_free_vgpr 512
  .amdhsa_next_free_sgpr 102
  .amdhsa_accum_offset 256
  .amdhsa_group_segment_fixed_size 0
  .amdhsa_kernarg_size 88
  .amdhsa_user_sgpr_count 2
  .amdhsa_user_sgpr_kernarg_segment_ptr 1
  .amdhsa_system_sgpr_workgroup_id_x 1
.end_amdhsa_kernel
"""

def header(launches):
    ref = open(f"cdna_kernels/{NAME}.s.ref").read().splitlines()
    out = [l for l in ref if l.startswith(";") and "@launch" not in l]
    out += launches
    out += ['.amdgcn_target "amdgcn-amd-amdhsa--gfx950"', ".text"]
    return "\n".join(out) + "\n"

def kstart(name):
    return f".globl {name}\n.p2align 8\n.type {name},@function\n{name}:\n"

def spin_kernel(kidx, slot, red, mult):
    c = Asm()
    c("s_cmp_ge_u32 s2, 1")
    c("s_cbranch_scc1 L_sp_done")
    c(f"s_load_dwordx2 s[{P_WS}:{P_WS+1}], s[0:1], 80")
    c("s_waitcnt lgkmcnt(0)")
    srd(c, SX, P_WS, 1 << 20, 16 << 20)
    c("v_lshlrev_b32 v1, 9, v0")
    for q in range(4):
        c(f"buffer_load_dword v{2+q}, v1, {sr(SX)}, 0 offen offset:{128*q}")
    c(f"s_mov_b32 s61, {kidx*32768 + slot*4}")
    for q in range(4):
        c(f"buffer_load_dword v{6+q}, v1, {sr(SX)}, s61 offen offset:{128*q}")
    c("s_waitcnt vmcnt(0)")
    for q in range(1, 4):
        c(f"v_min_u32 v2, v2, v{2+q}")
        c(f"v_{red}_u32 v6, v6, v{6+q}")
    c("s_nop 1")
    c("v_readlane_b32 s62, v2, 0")
    c("v_readlane_b32 s63, v6, 0")
    for l in range(1, 64):
        c(f"v_readlane_b32 s64, v2, {l}")
        c(f"v_readlane_b32 s65, v6, {l}")
        c("s_nop 3")
        c("s_min_u32 s62, s62, s64")
        c(f"s_{red}_u32 s63, s63, s65")
    c("s_sub_u32 s63, s63, s62")
    c("s_min_u32 s63, s63, 10000")
    c(f"s_mul_i32 s63, s63, {mult}")
    c("s_add_u32 s63, s63, 10000")
    c("s_mov_b32 s66, 2000000")
    c("L_sp:")
    c("s_memrealtime s[64:65]")
    c("s_waitcnt lgkmcnt(0)")
    c("s_sub_u32 s64, s64, s62")
    c("s_cmp_ge_u32 s64, s63")
    c("s_cbranch_scc1 L_sp_done")
    c("s_sub_u32 s66, s66, 1")
    c("s_cmp_lg_u32 s66, 0")
    c("s_cbranch_scc1 L_sp")
    c("L_sp_done:")
    c("s_endpgm")
    return c.text()

SPIN = None
def gen_2k(extra_empty=0):
    opt = dict(st="", ld="", early_a=True)
    a = Asm()
    common_prologue(a, 256, "L_s1_done")
    code_prefetch(a, 32768)
    a(f"s_cmp_ge_u32 s{S_J}, 21")
    a("s_cbranch_scc1 L_qkv")
    saved = list(a.vm)
    stage1_ffn(a, opt)
    stamp(a, 4)
    stamp_flush(a, 0)
    a("s_endpgm")
    a("L_qkv:")
    a.vm = saved
    stage1_qkv(a, opt)
    stamp(a, 4)
    stamp_flush(a, 0)
    a("L_s1_done:")
    a("s_endpgm")
    b = Asm()
    common_prologue(b, 256, "L_s2_done")
    code_prefetch(b, 8192)
    stage2(b, opt)
    stamp(b, 5)
    stamp_flush(b, 1)
    b("L_s2_done:")
    b("s_endpgm")
    launches = ["; @launch kernel=s1_kernel grid=(256,1,1) block=(256,1,1) lds=155648",
                "; @launch kernel=s2_kernel grid=(256,1,1) block=(256,1,1) lds=147456"]
    for _ in range(extra_empty):
        launches.append("; @launch kernel=e_kernel grid=(256,1,1) block=(256,1,1) lds=0" if SPIN is None else "; @launch kernel=e_kernel grid=(1,1,1) block=(64,1,1) lds=0")
    txt = header(launches) + kstart("s1_kernel") + a.text() + "\n" + kstart("s2_kernel") + b.text() + "\n"
    if extra_empty: txt += kstart("e_kernel") + ("  s_endpgm\n" if SPIN is None else spin_kernel(*SPIN) + "\n")
    txt += ".fill 2048, 4, 0xbf800000\n"
    txt += '.section .rodata,"a"\n.p2align 6\n' + kd("s1_kernel") + ".p2align 6\n" + kd("s2_kernel")
    if extra_empty: txt += ".p2align 6\n" + kd("e_kernel")
    return txt

if __name__ == "__main__":
    mode = sys.argv[1] if len(sys.argv) > 1 else "2k"
    out = sys.argv[2] if len(sys.argv) > 2 else f"cdna_kernels/{NAME}.s"
    if mode.endswith("-diag"):
        DIAG = True; mode = mode[:-5]
    if len(sys.argv) > 3:
        p = sys.argv[3].split(","); SPIN = (int(p[0]), int(p[1]), p[2], int(p[3]))
    if mode == "2k": txt = gen_2k()
    elif mode == "2k+e": txt = gen_2k(1)
    open(out, "w").write(txt)
    print("wrote", out, len(txt), "bytes")
```

```python
import sys
NAME = "gated_mix__sliding_local_dilated__glu_gated_glu__prompt"

NKC = 72
WS_FRAG_BYTES = 128 * NKC * 1024
WS_GATE_OFF = WS_FRAG_BYTES
WS_CNT_OFF = WS_GATE_OFF + 2048 * 8
LOG2E = 1.4426950408889634

import struct
def f2u(x): return struct.unpack("<I", struct.pack("<f", x))[0]

class Asm:
    def __init__(self):
        self.lines = []
        self.vm = []
    def __call__(self, s):
        if isinstance(s, (list, tuple)) and not (len(s) == 2 and isinstance(s, tuple)):
            for x in s: self(x)
            return
        if callable(s):
            s(self); return
        if isinstance(s, tuple):
            self.lines.append("  " + s[0]); self.vm.append(s[1])
            assert len(self.vm) <= 63, len(self.vm)
            return
        self.lines.append(("" if s.endswith(":") else "  ") + s)
    def vmcount(self, pred):
        idx = -1
        for i, t in enumerate(self.vm):
            if pred(t): idx = i
        if idx < 0: return None
        n = len(self.vm) - 1 - idx
        self.vm = self.vm[idx + 1:]
        return n
    def wait(self, pred=None, lgkm=None):
        parts = []
        if pred is not None:
            n = self.vmcount(pred)
            if n is not None:
                assert n <= 63, n
                parts.append(f"vmcnt({n})")
        if lgkm is not None: parts.append(f"lgkmcnt({lgkm})")
        if parts: self("s_waitcnt " + " ".join(parts))
    def text(self): return "\n".join(self.lines)

def vr(b, n=4): return f"v[{b}:{b+n-1}]"
def ar(b, n=4): return f"a[{b}:{b+n-1}]"

SX, SW0, SW1, SWS, SWO, SWD, SOUT, SG = 4, 8, 12, 16, 20, 24, 28, 32
P_X, P_WQKV, P_WO, P_BX, P_WG, P_WU, P_WD, P_GW, P_OUT, P_DBG, P_WS = 36, 38, 40, 42, 44, 46, 48, 50, 52, 54, 56
S_W = 60
S_SOFF = 61
S_XCD, S_J = 62, 63
S_T0, S_T1, S_T2, S_T3 = 64, 65, 66, 67
S_WB, S_XB = 68, 69
S_RB, S_CG = 70, 71
S_M0, S_M1, S_M2, S_M3 = 72, 74, 76, 78
S_C0 = 80

def srd(a, d, p, size, off=0):
    if off:
        a(f"s_add_u32 s{d}, s{p}, {off}")
        a(f"s_addc_u32 s{d+1}, s{p+1}, 0")
    else:
        a(f"s_mov_b32 s{d}, s{p}")
        a(f"s_mov_b32 s{d+1}, s{p+1}")
    a(f"s_mov_b32 s{d+2}, {size}")
    a(f"s_mov_b32 s{d+3}, 0x20000")

def sr(d): return f"s[{d}:{d+3}]"

def interleave(a, mfmas, fillers, tail=None, per_gap=2, start=0):
    n = len(mfmas)
    gaps = [[] for _ in range(n)]
    tail = tail or {}
    flat = fillers
    last = n - 3 if tail else n - 1
    g = start
    total = sum(1 for f in flat if f != "brk")
    span = max(1, last - start)
    cnt = 0
    for f in flat:
        if f == "brk":
            g += 1
            continue
        want = start + (cnt * span) // max(total, 1)
        if want > g: g = want
        while g < n - 1 and len(gaps[g]) >= per_gap: g += 1
        assert g <= last, (g, last)
        gaps[g].append(f)
        cnt += 1
    for i, m in enumerate(mfmas):
        a(m)
        for f in gaps[i]: a(f)
        if i in tail:
            for f in tail[i]: a(f)

DIAG = False
S_ST = 86
def stamp(a, i):
    if DIAG: a(f"s_memrealtime s[{S_ST+2*i}:{S_ST+2*i+1}]")
def stamp_flush(a, kidx):
    if not DIAG: return
    a("s_waitcnt vmcnt(0) lgkmcnt(0)")
    a.vm = []
    stamp(a, 7)
    a("s_waitcnt lgkmcnt(0)")
    for i in range(8): a(f"v_mov_b32 v{8+i}, s{S_ST+2*i}")
    srd(a, SX, P_WS, 1 << 20, 16 << 20)
    a(f"s_lshl_b32 s{S_T0}, s2, 7")
    a(f"s_lshl_b32 s{S_T1}, s{S_W}, 5")
    a(f"s_add_u32 s{S_T0}, s{S_T0}, s{S_T1}")
    a(f"s_add_u32 s{S_T0}, s{S_T0}, {kidx*32768}")
    a(f"v_mov_b32 v16, s{S_T0}")
    a("s_mov_b64 exec, 1")
    a(f"buffer_store_dwordx4 v[8:11], v16, {sr(SX)}, 0 offen")
    a(f"buffer_store_dwordx4 v[12:15], v16, {sr(SX)}, 0 offen offset:16")

def common_prologue(a, nwg, done):
    if DIAG:
        for i in range(8): a(f"s_mov_b64 s[{S_ST+2*i}:{S_ST+2*i+1}], 0")
    stamp(a, 0)
    a(f"s_cmp_ge_u32 s2, {nwg}")
    a(f"s_cbranch_scc1 {done}")
    a(f"s_load_dwordx16 s[{P_X}:{P_X+15}], s[0:1], 0")
    a(f"s_load_dwordx4 s[{P_OUT}:{P_OUT+3}], s[0:1], 64")
    a(f"s_load_dwordx2 s[{P_WS}:{P_WS+1}], s[0:1], 80")
    a("v_lshrrev_b32 v250, 6, v0")
    a("v_and_b32 v251, 63, v0")
    a(f"v_readfirstlane_b32 s{S_W}, v250")
    a(f"s_and_b32 s{S_XCD}, s2, 7")
    a(f"s_lshr_b32 s{S_J}, s2, 3")

def code_prefetch(a, nbytes):
    a(f"s_getpc_b64 s[{S_T0}:{S_T1}]")
    a("v_lshlrev_b32 v249, 7, v0")
    for i in range((nbytes + 32767) // 32768):
        a(f"v_cmp_gt_u32 vcc, {min(256, (nbytes - i*32768 + 127)//128)}, v0")
        a(f"s_and_saveexec_b64 s[{S_T2}:{S_T3}], vcc")
        a((f"global_load_dword a255, v249, s[{S_T0}:{S_T1}]", "pf"))
        a(f"s_mov_b64 exec, s[{S_T2}:{S_T3}]")
        a("v_add_u32 v249, 0x8000, v249")

V_W0, V_W1 = 176, 177
V_X = 178
V_WR = 186
V_XR = 190
V_L16 = 196
V_T = 200

def stage1_ffn(a, opt):
    NT = 11
    XBASE, XSLOT, WSLOT = 81920, 24576, 16384
    L = 251
    a(f"s_mul_i32 s{S_T0}, s{S_XCD}, 21")
    a(f"s_add_u32 s{S_T0}, s{S_T0}, s{S_J}")
    a(f"s_mul_i32 s{S_CG}, s{S_T0}, 5462")
    a(f"s_lshr_b32 s{S_CG}, s{S_CG}, 16")
    a(f"s_mul_i32 s{S_T1}, s{S_CG}, 12")
    a(f"s_sub_u32 s{S_RB}, s{S_T0}, s{S_T1}")
    a(f"s_lshl_b32 s{S_WB}, s{S_W}, 12")
    a(f"s_lshl_b32 s{S_XB}, s{S_W}, 10")
    a(f"s_and_b32 s{S_T2}, s{S_W}, 1")
    a(f"s_lshl_b32 s{S_T2}, s{S_T2}, 2")
    t0, t1, t2, t3 = V_T, V_T + 1, V_T + 2, V_T + 3
    a(f"v_lshrrev_b32 v{t0}, 4, v{L}")
    a(f"v_or_b32 v{t1}, s{S_T2}, v{t0}")
    a(f"v_and_b32 v{t2}, 7, v{L}")
    a(f"v_xor_b32 v{t2}, v{t2}, v{t1}")
    a(f"v_lshlrev_b32 v{t2}, 4, v{t2}")
    a(f"v_lshrrev_b32 v{t3}, 3, v{L}")
    a(f"s_mul_i32 s{S_T0}, s{S_RB}, 176")
    a(f"s_lshl_b32 s{S_T1}, s{S_W}, 3")
    a(f"s_add_u32 s{S_T0}, s{S_T0}, s{S_T1}")
    a(f"v_add_u32 v{t3}, s{S_T0}, v{t3}")
    a(f"v_lshl_add_u32 v{V_X}, v{t3}, 10, v{t2}")
    for m in range(1, 6):
        a(f"v_add_u32 v{V_X+m}, {32768*m}, v{V_X}")
    a(f"s_cmp_ge_u32 s{S_W}, 2")
    a(f"s_cselect_b32 s{S_T0}, 0x40000000, 0")
    a(f"v_or_b32 v{V_X+5}, s{S_T0}, v{V_X+5}")
    a(f"v_lshlrev_b32 v{t2}, 1, v{t1}")
    a(f"v_and_b32 v{t3}, 15, v{L}")
    a(f"v_xor_b32 v{t2}, v{t2}, v{t3}")
    a(f"v_lshlrev_b32 v{t2}, 4, v{t2}")
    a(f"v_add_u32 v{t3}, s{S_T1}, v{t0}")
    a(f"v_mul_u32_u24 v{t3}, 3584, v{t3}")
    a(f"s_lshl_b32 s{S_T0}, s{S_CG}, 8")
    a(f"v_add3_u32 v{V_W0}, v{t3}, v{t2}, s{S_T0}")
    a(f"v_add_u32 v{V_W1}, {4*3584}, v{V_W0}")
    a("s_waitcnt lgkmcnt(0)")
    srd(a, SX, P_X, 2048 * 1024)
    srd(a, SW0, P_WG, 512 * 3584)
    srd(a, SW1, P_WU, 512 * 3584)
    srd(a, SWS, P_WS, WS_FRAG_BYTES)

    def dma_w(s):
        out = []
        if s >= 16: return out
        out.append(f"s_mov_b32 s{S_SOFF}, {s*32*3584}")
        for mat in (0, 1):
            for half in (0, 1):
                out.append(f"s_add_u32 m0, s{S_WB}, {(s%5)*WSLOT + mat*2048 + half*1024}")
                out.append("brk")
                out.append((f"buffer_load_dwordx4 v{V_W1 if half else V_W0}, {sr(SW1 if mat else SW0)}, s{S_SOFF} offen lds", ("W", s)))
        return out
    def dma_x(j, ms):
        out = []
        if j >= 8: return out
        for m in ms:
            out.append(f"s_add_u32 m0, s{S_XB}, {XBASE + (j%3)*XSLOT + m*4096 - 128*j}")
            out.append("brk")
            out.append((f"buffer_load_dwordx4 v{V_X+m}, {sr(SX)}, 0 offen offset:{128*j} lds", ("X", j)))
        return out
    def plain(lst):
        for f in lst: a("s_nop 0" if f == "brk" else f)
    plain(dma_x(0, range(6))); plain(dma_w(0)); plain(dma_w(1)); plain(dma_x(1, range(6)))
    plain(dma_w(2)); plain(dma_w(3)); plain(dma_x(2, range(6))); plain(dma_w(4))
    a(f"v_lshrrev_b32 v{t1}, 2, v{L}")
    a(f"v_and_b32 v{t1}, 3, v{t1}")
    a(f"v_and_b32 v{t2}, 1, v{t0}")
    a(f"v_lshl_or_b32 v{t2}, v{t2}, 2, v{t1}")
    a(f"s_lshl_b32 s{S_T0}, s{S_W}, 1")
    a(f"v_xor_b32 v{t2}, s{S_T0}, v{t2}")
    a(f"v_lshlrev_b32 v{t2}, 5, v{t2}")
    a(f"v_lshl_add_u32 v{t2}, v{t0}, 12, v{t2}")
    a(f"v_lshl_add_u32 v{t2}, v{t1}, 8, v{t2}")
    a(f"v_and_b32 v{t3}, 3, v{L}")
    a(f"v_lshl_add_u32 v{V_WR}, v{t3}, 3, v{t2}")
    a(f"v_xor_b32 v{V_WR+1}, 32, v{V_WR}")
    a(f"v_add_u32 v{V_WR+2}, 0x10000, v{V_WR}")
    a(f"v_add_u32 v{V_WR+3}, 0x10000, v{V_WR+1}")
    a(f"v_and_b32 v{t1}, 15, v{L}")
    a(f"v_lshrrev_b32 v{t2}, 1, v{t1}")
    a(f"v_xor_b32 v{t2}, v{t2}, v{t0}")
    a(f"v_lshlrev_b32 v{t2}, 4, v{t2}")
    a(f"v_lshl_add_u32 v{t2}, v{t1}, 7, v{t2}")
    a(f"v_xor_b32 v{t3}, 64, v{t2}")
    for sl in range(3):
        a(f"v_add_u32 v{V_XR+2*sl}, {XBASE + sl*XSLOT}, v{t2}")
        a(f"v_add_u32 v{V_XR+2*sl+1}, {XBASE + sl*XSLOT}, v{t3}")
    a(f"v_lshlrev_b32 v{V_L16}, 4, v{L}")

    def WF(p, c): return p * 16 + c * 4
    def XF(p, t): return 32 + p * 44 + t * 4
    def reads(s):
        out = []
        if s >= 16: return out
        p = s & 1
        sl = s % 5
        for c in range(4):
            mat, T = c >> 1, c & 1
            for h in (0, 1):
                off = sl * WSLOT + mat * 2048 + h * 1024
                reg = V_WR + T
                if off >= 65536: off -= 65536; reg += 2
                out.append(f"ds_read_b64_tr_b16 {ar(WF(p,c)+2*h, 2)}, v{reg} offset:{off}")
        j, kk = s >> 1, s & 1
        for t in range(NT):
            out.append(f"ds_read_b128 {ar(XF(p,t))}, v{V_XR + 2*(j%3) + kk} offset:{t*2048}")
        return out
    def need(s):
        return lambda t: t == ("W", s) or t == ("X", s >> 1)
    if not opt.get('fused'): stamp(a, 1)
    a.wait(need(0))
    a("s_barrier")
    stamp(a, 2)
    if DIAG and not opt.get('fused'): a(f"s_memtime s[{S_ST+10}:{S_ST+11}]")
    if DIAG: a("s_waitcnt lgkmcnt(0)")
    plain(reads(0))
    a.wait(need(1), lgkm=0)
    a("s_barrier")
    for s in range(16):
        p = s & 1
        mf = []
        for t in range(NT):
            for c in range(4):
                d = (t * 4 + c) * 4
                mf.append(f"v_mfma_f32_16x16x32_bf16 {vr(d)}, {ar(WF(p,c))}, {ar(XF(p,t))}, {'0' if s == 0 else vr(d)}")
        rd = reads(s + 1)
        dm = dma_w(s + 5)
        if s >= 1:
            j = (s - 1) // 2 + 3
            dm = dm + dma_x(j, range(0, 3) if (s & 1) else range(3, 6))
        fl = []
        ri = 0
        groups = []
        cur = []
        for f in dm:
            cur.append(f)
            if isinstance(f, tuple): groups.append(cur); cur = []
        per = max(1, (len(rd) + max(len(groups), 1) - 1) // max(len(groups), 1))
        gi = 0
        while ri < len(rd) or gi < len(groups):
            fl += rd[ri:ri + per]; ri += per
            if gi < len(groups): fl += groups[gi]; gi += 1
        tail = {}
        if s < 15:
            tail[len(mf) - 2] = [(lambda aa, s=s: aa.wait(need(s + 2), lgkm=0)), "s_barrier"] if s < 14 else [(lambda aa: aa.wait(None, lgkm=0))]
        interleave(a, mf, fl, tail or {len(mf) - 2: []})
    stamp(a, 3)
    if DIAG and not opt.get('fused'): a(f"s_memtime s[{S_ST+12}:{S_ST+13}]")
    a(f"s_mul_i32 s{S_T0}, s{S_RB}, {11*NKC}")
    a(f"s_lshl_b32 s{S_T1}, s{S_CG}, 2")
    a(f"s_add_u32 s{S_T0}, s{S_T0}, s{S_T1}")
    a(f"s_add_u32 s{S_T0}, s{S_T0}, s{S_W}")
    a(f"s_add_u32 s{S_T0}, s{S_T0}, 16")
    a(f"s_lshl_b32 s{S_SOFF}, s{S_T0}, 10")
    a(f"s_mov_b32 s{S_C0}, {f2u(-LOG2E)}")
    a("s_nop 4")
    for t in range(NT):
        g = t * 16; u = g + 8
        o = V_T + 4 * (t & 1)
        for e in range(8): a(f"v_mul_f32 v{g+e}, s{S_C0}, v{g+e}")
        for e in range(8): a(f"v_exp_f32 v{g+e}, v{g+e}")
        for e in range(8): a(f"v_add_f32 v{g+e}, 1.0, v{g+e}")
        for e in range(8): a(f"v_rcp_f32 v{g+e}, v{g+e}")
        for e in range(8): a(f"v_mul_f32 v{g+e}, v{g+e}, v{u+e}")
        for e in range(4): a(f"v_cvt_pk_bf16_f32 v{o+e}, v{g+2*e}, v{g+2*e+1}")
        a((f"buffer_store_dwordx4 {vr(o)}, v{V_L16}, {sr(SWS)}, s{S_SOFF} offen {opt['st']}", ("ST", t)))
        a(f"s_add_u32 s{S_SOFF}, s{S_SOFF}, {NKC*1024}")

def stage1_qkv(a, opt):
    XBASE, XSLOT, WSLOT, GWBASE = 61440, 28672, 12288, 147456
    L = 251
    V_WQ = 176
    V_GX = 197
    V_GW = 199
    t0, t1, t2, t3 = V_T, V_T + 1, V_T + 2, V_T + 3
    a(f"s_sub_u32 s{S_RB}, s{S_J}, 21")
    a(f"s_mov_b32 s{S_CG}, s{S_XCD}")
    a(f"s_mul_i32 s{S_WB}, s{S_W}, 3072")
    a(f"s_lshl_b32 s{S_XB}, s{S_W}, 10")
    a(f"s_and_b32 s{S_T2}, s{S_W}, 1")
    a(f"s_lshl_b32 s{S_T3}, s{S_T2}, 2")
    a(f"v_lshrrev_b32 v{t0}, 4, v{L}")
    a(f"v_or_b32 v{t1}, s{S_T3}, v{t0}")
    a(f"v_and_b32 v{t2}, 7, v{L}")
    a(f"v_xor_b32 v{t2}, v{t2}, v{t1}")
    a(f"v_lshlrev_b32 v{t2}, 4, v{t2}")
    a(f"v_lshrrev_b32 v{t3}, 3, v{L}")
    a(f"s_mul_i32 s{S_T0}, s{S_RB}, 192")
    a(f"s_lshl_b32 s{S_T1}, s{S_W}, 3")
    a(f"s_add_u32 s{S_T0}, s{S_T0}, s{S_T1}")
    a(f"s_sub_u32 s{S_T0}, s{S_T0}, 16")
    a(f"v_add_u32 v{t3}, s{S_T0}, v{t3}")
    a(f"v_lshl_add_u32 v{V_X}, v{t3}, 10, v{t2}")
    for m in range(1, 7):
        a(f"v_add_u32 v{V_X+m}, {32768*m}, v{V_X}")
    a(f"s_cmp_ge_u32 s{S_W}, 2")
    a(f"s_cselect_b32 s{S_T0}, 0x40000000, 0")
    a(f"v_or_b32 v{V_X+6}, s{S_T0}, v{V_X+6}")
    a(f"v_and_b32 v{t1}, 1, v{t0}")
    a(f"v_lshlrev_b32 v{t1}, 1, v{t1}")
    a(f"v_or_b32 v{t1}, s{S_T3}, v{t1}")
    a(f"v_and_b32 v{t2}, 7, v{L}")
    a(f"v_xor_b32 v{t2}, v{t2}, v{t1}")
    a(f"v_lshlrev_b32 v{t2}, 4, v{t2}")
    a(f"v_lshrrev_b32 v{t3}, 3, v{L}")
    a(f"v_add_u32 v{t3}, s{S_T1}, v{t3}")
    a(f"v_mul_u32_u24 v{t3}, 3072, v{t3}")
    a(f"s_lshl_b32 s{S_T0}, s{S_CG}, 7")
    a(f"v_add3_u32 v{V_WQ}, v{t3}, v{t2}, s{S_T0}")
    a(f"v_lshlrev_b32 v{V_L16}, 4, v{L}")
    a("s_waitcnt lgkmcnt(0)")
    srd(a, SX, P_X, 2048 * 1024)
    srd(a, SW0, P_WQKV, 512 * 3072)
    srd(a, SW1, P_GW, 1024)
    srd(a, SWS, P_WS, WS_FRAG_BYTES)
    srd(a, SG, P_WS, 2048 * 8, WS_GATE_OFF)

    def dma_w(s):
        out = []
        if s >= 16: return out
        out.append(f"s_mov_b32 s{S_SOFF}, {s*32*3072}")
        out.append(f"s_add_u32 m0, s{S_WB}, {(s%5)*WSLOT}")
        out.append("brk")
        for mat in range(3):
            out.append((f"buffer_load_dwordx4 v{V_WQ}, {sr(SW0)}, s{S_SOFF} offen offset:{mat*1024} lds", ("W", s)))
        return out
    def dma_x(j, ms):
        out = []
        if j >= 8: return out
        for m in ms:
            out.append(f"s_add_u32 m0, s{S_XB}, {XBASE + (j%3)*XSLOT + m*4096 - 128*j}")
            out.append("brk")
            out.append((f"buffer_load_dwordx4 v{V_X+m}, {sr(SX)}, 0 offen offset:{128*j} lds", ("X", j)))
        return out
    def plain(lst):
        for f in lst: a("s_nop 0" if f == "brk" else f)
    a(f"s_mov_b32 m0, {GWBASE}")
    a("s_nop 0")
    a((f"buffer_load_dwordx4 v{V_L16}, {sr(SW1)}, 0 offen lds", ("X", 0)))
    plain(dma_x(0, range(7))); plain(dma_w(0)); plain(dma_w(1)); plain(dma_x(1, range(7)))
    plain(dma_w(2)); plain(dma_w(3)); plain(dma_x(2, range(7))); plain(dma_w(4))
    a(f"v_lshrrev_b32 v{t1}, 2, v{L}")
    a(f"v_and_b32 v{t1}, 3, v{t1}")
    a(f"v_and_b32 v{t2}, 1, v{t0}")
    a(f"v_lshlrev_b32 v{t2}, 1, v{t2}")
    a(f"v_lshrrev_b32 v{t3}, 1, v{t1}")
    a(f"v_or_b32 v{t2}, v{t2}, v{t3}")
    a(f"s_lshl_b32 s{S_T0}, s{S_T2}, 1")
    a(f"v_xor_b32 v{t2}, s{S_T0}, v{t2}")
    a(f"v_lshlrev_b32 v{t2}, 5, v{t2}")
    a(f"v_mul_u32_u24 v{t3}, 3072, v{t0}")
    a(f"v_add_u32 v{t2}, v{t2}, v{t3}")
    a(f"v_lshl_add_u32 v{t2}, v{t1}, 7, v{t2}")
    a(f"v_and_b32 v{t3}, 3, v{L}")
    a(f"v_lshl_add_u32 v{V_WR}, v{t3}, 3, v{t2}")
    a(f"v_xor_b32 v{V_WR+1}, 32, v{V_WR}")
    a(f"v_and_b32 v{t1}, 15, v{L}")
    a(f"v_lshrrev_b32 v{t2}, 1, v{t1}")
    a(f"v_xor_b32 v{t2}, v{t2}, v{t0}")
    a(f"v_lshlrev_b32 v{t2}, 4, v{t2}")
    a(f"v_lshl_add_u32 v{t2}, v{t1}, 7, v{t2}")
    a(f"s_lshl_b32 s{S_T0}, s{S_CG}, 2")
    a(f"s_add_u32 s{S_T0}, s{S_T0}, s{S_W}")
    a(f"s_min_u32 s{S_T0}, s{S_T0}, 11")
    a(f"s_add_u32 s{S_T0}, s{S_T0}, 1")
    a(f"s_lshl_b32 s{S_T0}, s{S_T0}, 11")
    a(f"s_add_u32 s{S_T0}, s{S_T0}, {XBASE}")
    a(f"v_add_u32 v{V_GX}, s{S_T0}, v{t2}")
    a(f"v_xor_b32 v{V_GX+1}, 64, v{V_GX}")
    a(f"s_lshr_b32 s{S_T0}, s{S_W}, 1")
    a(f"s_mul_i32 s{S_T0}, s{S_T0}, {6*2048}")
    a(f"v_add_u32 v{t2}, s{S_T0}, v{t2}")
    a(f"v_xor_b32 v{t3}, 64, v{t2}")
    for sl in range(3):
        a(f"v_add_u32 v{V_XR+2*sl}, {XBASE + sl*XSLOT}, v{t2}")
        a(f"v_add_u32 v{V_XR+2*sl+1}, {XBASE + sl*XSLOT}, v{t3}")
    a(f"v_lshlrev_b32 v{V_GW}, 4, v{t0}")
    a(f"v_add_u32 v{V_GW}, {GWBASE}, v{V_GW}")

    def Q(h, t): return (h * 6 + (t - 1)) * 4
    def K(h, t): return 48 + (h * 7 + t) * 4
    def V(h, t): return 104 + (h * 7 + t) * 4
    GA = 160
    def WF(p, mat, h): return p * 24 + (mat * 2 + h) * 4
    def XF(p, t): return 48 + p * 28 + t * 4
    def GX(p): return 104 + p * 8
    def GW(p): return 108 + p * 8
    def reads(s):
        out = []
        if s >= 16: return out
        p = s & 1; sl = s % 5
        for mat in range(3):
            for hh in (0, 1):
                for h in (0, 1):
                    off = sl * WSLOT + mat * 1024 + h * 512
                    out.append(f"ds_read_b64_tr_b16 {ar(WF(p,mat,hh)+2*h, 2)}, v{V_WR+hh} offset:{off}")
        j, kk = s >> 1, s & 1
        for t in range(7):
            out.append(f"ds_read_b128 {ar(XF(p,t))}, v{V_XR + 2*(j%3) + kk} offset:{t*2048}")
        out.append(f"ds_read_b128 {ar(GX(p))}, v{V_GX+kk} offset:{(j%3)*XSLOT}")
        out.append(f"ds_read_b128 {ar(GW(p))}, v{V_GW} offset:{s*64}")
        return out
    def need(s):
        return lambda t: t == ("W", s) or t == ("X", s >> 1)
    if not opt.get('fused'): stamp(a, 1)
    a.wait(need(0))
    a("s_barrier")
    stamp(a, 2)
    if DIAG and not opt.get('fused'): a(f"s_memtime s[{S_ST+10}:{S_ST+11}]")
    if DIAG: a("s_waitcnt lgkmcnt(0)")
    plain(reads(0))
    a.wait(need(1), lgkm=0)
    a("s_barrier")
    for s in range(16):
        p = s & 1
        mf = []
        def M(d, A, B): mf.append(f"v_mfma_f32_16x16x32_bf16 {vr(d)}, {ar(A)}, {ar(B)}, {'0' if s == 0 else vr(d)}")
        M(GA, GW(p), GX(p))
        for t in range(7):
            for hh in (0, 1):
                if t >= 1: M(Q(hh, t), WF(p, 0, hh), XF(p, t))
                M(K(hh, t), WF(p, 1, hh), XF(p, t))
                M(V(hh, t), XF(p, t), WF(p, 2, hh))
        rd = reads(s + 1)
        dm = dma_w(s + 5)
        if s >= 1:
            j = (s - 1) // 2 + 3
            dm = dm + dma_x(j, range(0, 4) if (s & 1) else range(4, 7))
        groups = []; cur = []
        for f in dm:
            cur.append(f)
            if isinstance(f, tuple): groups.append(cur); cur = []
        per = max(1, (len(rd) + max(len(groups), 1) - 1) // max(len(groups), 1))
        fl = []; ri = 0; gi = 0
        while ri < len(rd) or gi < len(groups):
            fl += rd[ri:ri + per]; ri += per
            if gi < len(groups): fl += groups[gi]; gi += 1
        tail = {}
        if s < 15:
            tail[len(mf) - 2] = [(lambda aa, s=s: aa.wait(need(s + 2), lgkm=0)), "s_barrier"] if s < 14 else [(lambda aa: aa.wait(None, lgkm=0))]
        interleave(a, mf, fl, tail or {len(mf) - 2: []})

    stamp(a, 3)
    if DIAG and not opt.get('fused'): a(f"s_memtime s[{S_ST+12}:{S_ST+13}]")
    SELY, SELP = 176, 178
    j_, g_, par, d1 = t0, t1, t2, t3
    a(f"v_and_b32 v{j_}, 15, v{L}")
    a(f"v_lshrrev_b32 v{g_}, 4, v{L}")
    a(f"v_and_b32 v{par}, 1, v{j_}")
    a(f"v_lshlrev_b32 v{g_}, 2, v{g_}")
    a(f"v_sub_u32 v{d1}, v{j_}, v{g_}")
    a(f"v_sub_u32 v{d1}, v{d1}, v{par}")
    a(f"v_cmp_le_i32 s[{S_M0}:{S_M0+1}], 0, v{d1}")
    a(f"v_cmp_le_i32 s[{S_M1}:{S_M1+1}], 2, v{d1}")
    a(f"v_cmp_eq_u32 vcc, 1, v{par}")
    t4, t5 = V_T + 4, V_T + 5
    a(f"v_mov_b32 v{t4}, 0x01000c0c")
    a(f"v_mov_b32 v{t5}, 0x03020c0c")
    a(f"v_cndmask_b32 v{t4}, v{t4}, v{t5}, vcc")
    a(f"v_add_u32 v{t5}, 0x04040000, v{t4}")
    a(f"v_cndmask_b32 v{SELY}, v{t4}, v{t5}, s[{S_M0}:{S_M0+1}]")
    a(f"v_cndmask_b32 v{SELY+1}, v{t4}, v{t5}, s[{S_M1}:{S_M1+1}]")
    zero = V_T + 6
    a(f"v_mov_b32 v{zero}, 0x0c0c0c0c")
    for u in (0, 1):
        lo = 0x0c0c0000 | ((2*u+1) << 8) | (2*u)
        hi = 0x00000c0c | ((2*u+1) << 24) | ((2*u) << 16)
        a(f"v_mov_b32 v{t4}, {lo}")
        a(f"v_mov_b32 v{t5}, {hi}")
        a(f"v_cndmask_b32 v{t4}, v{t4}, v{t5}, vcc")
        M_ = S_M0 if u == 0 else S_M1
        a(f"v_cndmask_b32 v{SELP+u}, v{t4}, v{zero}, s[{M_}:{M_+1}]")
        a(f"v_cndmask_b32 v{SELP+2+u}, v{zero}, v{t4}, s[{M_}:{M_+1}]")
    a(f"s_lshr_b32 s{S_T0}, s{S_W}, 1")
    a(f"s_or_b32 s{S_T0}, s{S_T0}, s{S_RB}")
    a(f"s_not_b64 s[{S_M2}:{S_M2+1}], s[{S_M0}:{S_M0+1}]")
    a(f"s_not_b64 s[{S_M3}:{S_M3+1}], s[{S_M1}:{S_M1+1}]")
    a(f"s_cmp_eq_u32 s{S_T0}, 0")
    a(f"s_cselect_b64 s[{S_M2}:{S_M2+1}], s[{S_M2}:{S_M2+1}], 0")
    a(f"s_cselect_b64 s[{S_M3}:{S_M3+1}], s[{S_M3}:{S_M3+1}], 0")
    NEG = 182
    a(f"v_mov_b32 v{NEG}, {f2u(-4e9)}")
    a(f"s_mov_b32 s{S_C0}, {f2u(0.25*LOG2E)}")
    a(f"s_mov_b32 s{S_C0+1}, {f2u(-LOG2E)}")
    a(f"v_cvt_pk_bf16_f32 v{t4}, v{GA}, v{GA}")
    a(f"v_and_b32 v{t4}, 0xffff0000, v{t4}")
    a(f"v_mul_f32 v{t4}, s{S_C0+1}, v{t4}")
    a(f"v_exp_f32 v{t4}, v{t4}")
    a("s_nop 0")
    a(f"v_add_f32 v{t4}, 1.0, v{t4}")
    a(f"v_rcp_f32 v{t4}, v{t4}")
    a("s_nop 0")
    a(f"v_cvt_pk_bf16_f32 v{t4}, v{t4}, v{t4}")
    a(f"v_and_b32 v{t4}, 0xffff0000, v{t4}")
    a(f"v_sub_f32 v{t5}, 1.0, v{t4}")
    a(f"v_cvt_pk_bf16_f32 v{t5}, v{t5}, v{t5}")
    a(f"v_and_b32 v{t5}, 0xffff0000, v{t5}")
    a(f"s_lshl_b32 s{S_T0}, s{S_CG}, 2")
    a(f"s_add_u32 s{S_T0}, s{S_T0}, s{S_W}")
    a(f"s_mul_i32 s{S_T1}, s{S_RB}, 12")
    a(f"s_add_u32 s{S_T1}, s{S_T1}, s{S_T0}")
    a(f"s_lshl_b32 s{S_T1}, s{S_T1}, 7")
    a(f"s_cmp_ge_u32 s{S_T0}, 12")
    a(f"s_cselect_b32 s{S_T1}, 0x40000000, s{S_T1}")
    a(f"v_lshlrev_b32 v{g_}, 16, v{g_}")
    a(f"v_lshl_add_u32 v{g_}, v{j_}, 3, v{g_}")
    a(f"v_add_u32 v{g_}, s{S_T1}, v{g_}")
    a((f"buffer_store_dwordx2 {vr(t4,2)}, v{g_}, {sr(SG)}, 0 offen {opt['st']}", ("ST", -1)))
    VP = 208
    for hh in (0, 1):
        for t in range(7):
            if t >= 1:
                q = Q(hh, t)
                a(f"v_cvt_pk_bf16_f32 v{q}, v{q}, v{q+1}")
                a(f"v_cvt_pk_bf16_f32 v{q+1}, v{q+2}, v{q+3}")
            k = K(hh, t)
            a(f"v_cvt_pk_bf16_f32 v{k}, v{k}, v{k+1}")
            a(f"v_cvt_pk_bf16_f32 v{k+1}, v{k+2}, v{k+3}")
            v = V(hh, t)
            a(f"v_cvt_pk_bf16_f32 v{VP+hh*14+2*t}, v{v}, v{v+1}")
            a(f"v_cvt_pk_bf16_f32 v{VP+hh*14+2*t+1}, v{v+2}, v{v+3}")
    a(f"s_lshr_b32 s{S_T0}, s{S_W}, 1")
    a(f"s_mul_i32 s{S_T0}, s{S_T0}, 6")
    a(f"s_mul_i32 s{S_T1}, s{S_RB}, 12")
    a(f"s_add_u32 s{S_T0}, s{S_T0}, s{S_T1}")
    a(f"s_mul_i32 s{S_T0}, s{S_T0}, {NKC}")
    a(f"s_lshl_b32 s{S_T1}, s{S_CG}, 1")
    a(f"s_add_u32 s{S_T0}, s{S_T0}, s{S_T1}")
    a(f"s_and_b32 s{S_T1}, s{S_W}, 1")
    a(f"s_add_u32 s{S_T0}, s{S_T0}, s{S_T1}")
    a(f"s_lshl_b32 s{S_SOFF}, s{S_T0}, 10")
    OUT = 236
    for half in (0, 1):
        units = [(t, hh) for t in range(1 + 3 * half, 4 + 3 * half) for hh in (0, 1)]
        def S(n): return 104 + 8 * n
        for n, (t, hh) in enumerate(units):
            a(f"v_mfma_f32_16x16x16_bf16 {vr(S(n))}, {vr(K(hh,t-1),2)}, {vr(Q(hh,t),2)}, 0")
            a(f"v_mfma_f32_16x16x16_bf16 {vr(S(n)+4)}, {vr(K(hh,t),2)}, {vr(Q(hh,t),2)}, 0")
        a("s_nop 7")
        U = range(6)
        for n in U:
            s = S(n)
            a(f"v_cvt_pk_bf16_f32 v{s}, v{s}, v{s+1}")
            a(f"v_cvt_pk_bf16_f32 v{s+1}, v{s+2}, v{s+3}")
            a(f"v_cvt_pk_bf16_f32 v{s+4}, v{s+4}, v{s+5}")
            a(f"v_cvt_pk_bf16_f32 v{s+5}, v{s+6}, v{s+7}")
            a(f"v_perm_b32 v{s+2}, v{s+4}, v{s}, v{SELY}")
            a(f"v_perm_b32 v{s+3}, v{s+5}, v{s+1}, v{SELY+1}")
            if units[n][0] == 1:
                a(f"v_cndmask_b32 v{s+2}, v{s+2}, v{NEG}, s[{S_M2}:{S_M2+1}]")
                a(f"v_cndmask_b32 v{s+3}, v{s+3}, v{NEG}, s[{S_M3}:{S_M3+1}]")
        def allreduce(op):
            for swap in ("v_permlane16_swap_b32", "v_permlane32_swap_b32"):
                for n in U: a(f"v_mov_b32 v{S(n)+1}, v{S(n)}")
                a("s_nop 1")
                for n in U: a(f"{swap} v{S(n)}, v{S(n)+1}")
                a("s_nop 1")
                for n in U: a(f"{op} v{S(n)}, v{S(n)}, v{S(n)+1}")
        for n in U: a(f"v_max_f32 v{S(n)}, v{S(n)+2}, v{S(n)+3}")
        allreduce("v_max_f32")
        for n in U:
            a(f"v_sub_f32 v{S(n)+2}, v{S(n)+2}, v{S(n)}")
            a(f"v_sub_f32 v{S(n)+3}, v{S(n)+3}, v{S(n)}")
        for n in U:
            a(f"v_mul_f32 v{S(n)+2}, s{S_C0}, v{S(n)+2}")
            a(f"v_mul_f32 v{S(n)+3}, s{S_C0}, v{S(n)+3}")
        for n in U:
            a(f"v_exp_f32 v{S(n)+2}, v{S(n)+2}")
            a(f"v_exp_f32 v{S(n)+3}, v{S(n)+3}")
        a("s_nop 0")
        for n in U: a(f"v_add_f32 v{S(n)}, v{S(n)+2}, v{S(n)+3}")
        allreduce("v_add_f32")
        for n in U: a(f"v_rcp_f32 v{S(n)}, v{S(n)}")
        a("s_nop 0")
        for n in U:
            a(f"v_mul_f32 v{S(n)+2}, v{S(n)+2}, v{S(n)}")
            a(f"v_mul_f32 v{S(n)+3}, v{S(n)+3}, v{S(n)}")
        for n in U: a(f"v_cvt_pk_bf16_f32 v{S(n)}, v{S(n)+2}, v{S(n)+3}")
        for n in U:
            for q in range(4):
                a(f"v_perm_b32 v{S(n)+4+q}, v{S(n)}, v{S(n)}, v{SELP+q}")
        a("s_nop 1")
        for n, (t, hh) in enumerate(units):
            a(f"v_mfma_f32_16x16x32_bf16 {vr(S(n))}, {vr(VP+hh*14+2*(t-1))}, {vr(S(n)+4)}, 0")
        a("s_nop 7")
        for n, (t, hh) in enumerate(units):
            o = OUT + 4 * (n >> 1) + 2 * hh
            a(f"v_cvt_pk_bf16_f32 v{o}, v{S(n)}, v{S(n)+1}")
            a(f"v_cvt_pk_bf16_f32 v{o+1}, v{S(n)+2}, v{S(n)+3}")
            if hh == 1:
                a((f"buffer_store_dwordx4 {vr(OUT + 4*(n>>1))}, v{V_L16}, {sr(SWS)}, s{S_SOFF} offen {opt['st']}", ("ST", t)))
                a(f"s_add_u32 s{S_SOFF}, s{S_SOFF}, {NKC*1024}")
        if half == 0: a("s_nop 1")

def stage2(a, opt):
    L = 251
    WREG = 36864
    V_B = 0
    V_ACC = 32
    V_A = 96
    V_BD, V_BR, V_L16b, V_G, V_RW = 240, 241, 245, 246, 248
    t0, t1, t2, t3 = 252, 253, 254, 255
    ld = opt['ld']
    a(f"s_lshl_b32 s{S_RB}, s{S_XCD}, 2")
    a(f"s_lshr_b32 s{S_T0}, s{S_J}, 3")
    a(f"s_add_u32 s{S_RB}, s{S_RB}, s{S_T0}")
    a(f"s_and_b32 s{S_CG}, s{S_J}, 7")
    a(f"s_mul_i32 s{S_WB}, s{S_W}, {WREG}")
    a(f"v_lshrrev_b32 v{t0}, 4, v{L}")
    a(f"v_lshlrev_b32 v{t1}, 1, v{t0}")
    a(f"v_and_b32 v{t2}, 7, v{L}")
    a(f"v_xor_b32 v{t2}, v{t2}, v{t1}")
    a(f"v_lshlrev_b32 v{t2}, 4, v{t2}")
    a(f"v_lshrrev_b32 v{t3}, 3, v{L}")
    a(f"v_lshl_add_u32 v{t2}, v{t3}, 10, v{t2}")
    a(f"s_lshl_b32 s{S_T0}, s{S_CG}, 7")
    a(f"v_add_u32 v{V_BD}, s{S_T0}, v{t2}")
    a(f"v_lshlrev_b32 v{V_L16b}, 4, v{L}")
    a("s_waitcnt lgkmcnt(0)")
    srd(a, SWO, P_WO, 512 * 1024)
    srd(a, SWD, P_WD, 1792 * 1024)
    srd(a, SWS, P_WS, WS_FRAG_BYTES)
    srd(a, SG, P_WS, 2048 * 8, WS_GATE_OFF)
    srd(a, SOUT, P_OUT, 2048 * 1024)
    S_BO, S_BH, S_AO, S_AH = 82, 83, 84, 85
    a(f"s_mul_i32 s{S_BO}, s{S_W}, {4*32*1024}")
    a(f"s_mul_i32 s{S_BH}, s{S_W}, {14*32*1024}")
    a(f"s_mul_i32 s{S_T0}, s{S_RB}, {4*NKC*1024}")
    a(f"s_lshl_b32 s{S_AO}, s{S_W}, 12")
    a(f"s_add_u32 s{S_AO}, s{S_AO}, s{S_T0}")
    a(f"s_mul_i32 s{S_AH}, s{S_W}, {14*1024}")
    a(f"s_add_u32 s{S_AH}, s{S_AH}, s{S_T0}")
    a(f"s_add_u32 s{S_AH}, s{S_AH}, {16*1024}")
    def dma_b(c):
        for n in range(4):
            if c < 4: a(f"s_add_u32 s{S_SOFF}, s{S_BO}, {(c*32 + n*8)*1024}")
            else: a(f"s_add_u32 s{S_SOFF}, s{S_BH}, {((c-4)*32 + n*8)*1024}")
            a(f"s_add_u32 m0, s{S_WB}, {(c%9)*4096 + n*1024}")
            a("s_nop 0")
            a((f"buffer_load_dwordx4 v{V_BD}, {sr(SWO if c < 4 else SWD)}, s{S_SOFF} offen lds", ("B", c)))
    def breg(c, T, n=4, o=0):
        if c < 16: return ar(c * 16 + T * 4 + o, n)
        return vr(V_B + (c - 16) * 16 + T * 4 + o, n)
    def areg(rt, c): return V_A + ((rt * 18 + c) % 36) * 4
    def load_a(rt, c):
        out = []
        base = S_AO if c < 4 else S_AH
        cc = c if c < 4 else c - 4
        q, r = divmod(cc, 4)
        if r == 0: out.append(f"s_add_u32 s{S_SOFF}, s{base}, {rt*NKC*1024 + q*4096}")
        out.append((f"buffer_load_dwordx4 {vr(areg(rt,c))}, v{V_L16b}, {sr(SWS)}, s{S_SOFF} offen offset:{r*1024} {ld}", ("A", rt, c)))
        return out
    for c in range(9): dma_b(c)
    a(f"v_lshrrev_b32 v{t1}, 2, v{L}")
    a(f"v_lshrrev_b32 v{t2}, 1, v{t1}")
    a(f"v_and_b32 v{t2}, 3, v{t2}")
    a(f"v_lshlrev_b32 v{t2}, 5, v{t2}")
    a(f"v_lshl_add_u32 v{t2}, v{t1}, 7, v{t2}")
    a(f"v_and_b32 v{t3}, 3, v{L}")
    a(f"v_lshl_add_u32 v{t2}, v{t3}, 3, v{t2}")
    for T in range(4):
        a(f"v_xor_b32 v{V_BR+T}, {32*T}, v{t2}")
        a(f"v_add_u32 v{V_BR+T}, s{S_WB}, v{V_BR+T}")
    a(f"v_and_b32 v{t1}, 15, v{L}")
    a(f"v_and_b32 v{t2}, 7, v{L}")
    a(f"v_xor_b32 v{t2}, v{t2}, v{t0}")
    a(f"v_lshlrev_b32 v{t2}, 4, v{t2}")
    a(f"v_lshl_add_u32 v{V_RW}, v{t1}, 8, v{t2}")
    def read_b(c):
        for T in range(4):
            for h in (0, 1):
                a(f"ds_read_b64_tr_b16 {breg(c,T,2,2*h)}, v{V_BR+T} offset:{(c%9)*4096 + h*2048}")
    if opt.get('early_a'):
        for c in range(18): a(load_a(0, c))
    fused = opt.get('fused')
    if not fused: stamp(a, 1)
    for c in range(9):
        a.wait(lambda t, c=c: t == ("B", c))
        if c == 0 and not fused:
            stamp(a, 2)
            if DIAG: a("s_waitcnt lgkmcnt(0)")
        read_b(c)
        if c >= 1:
            a("s_waitcnt lgkmcnt(8)")
            dma_b(c - 1 + 9)
    a("s_waitcnt lgkmcnt(0)")
    dma_b(17)
    if opt.get('sync'): opt['sync'](a)
    if not opt.get('early_a'):
        for c in range(9, 18):
            a.wait(lambda t, c=c: t == ("B", c))
            read_b(c)
        if fused:
            a("s_waitcnt lgkmcnt(0)")
            stamp(a, 5)
            opt['sync2'](a)
            stamp(a, 6)
        for c in range(18): a(load_a(0, c))
        for c in range(18): a(load_a(1, c))
    else:
        for c in range(9, 18):
            a.wait(lambda t, c=c: t == ("B", c))
            read_b(c)
            a(load_a(1, 2*(c-9))); a(load_a(1, 2*(c-9)+1))
    VG = 224
    a(f"s_lshl_b32 s{S_T1}, s{S_RB}, 9")
    a(f"v_lshlrev_b32 v{t3}, 3, v{t1}")
    a("s_waitcnt lgkmcnt(0)")
    if not fused: stamp(a, 3)
    GREG = [240, 242, 246, 252]
    for rt in range(4):
        a((f"buffer_load_dwordx2 {vr(GREG[rt],2)}, v{t3}, {sr(SG)}, s{S_T1} offen offset:{rt*128} {ld}", ("G", rt)))
    a(f"v_add_u32 v{V_RW}, s{S_WB}, v{V_RW}")
    a(f"v_xor_b32 v{249}, 64, v{V_RW}")
    a(f"v_xor_b32 v{250}, 128, v{V_RW}")
    a(f"v_xor_b32 v{244}, 192, v{V_RW}")
    RW = [V_RW, 249, 250, 244]
    def combine(rt):
        out = []
        acc = V_ACC + 32 * (rt & 1)
        out.append(lambda aa, rt=rt: aa.wait(lambda t: t == ("G", rt)))
        for T in range(4):
            for e in range(4): out.append(f"v_mul_f32 v{acc+4*T+e}, v{GREG[rt]}, v{acc+4*T+e}")
            for e in range(4): out.append(f"v_fmac_f32 v{acc+4*T+e}, v{GREG[rt]+1}, v{acc+16+4*T+e}")
            out.append(f"ds_write_b128 v{RW[T]}, {vr(acc+4*T)} offset:{rt*4096}")
        return out
    for rt in range(4):
        acc = V_ACC + 32 * (rt & 1)
        pend = combine(rt - 1) if rt >= 1 else []
        for c in range(18):
            a.wait(lambda t, rt=rt, c=c: t == ("A", rt, c))
            for T in range(4):
                d = acc + (0 if c < 4 else 16) + 4 * T
                first = c == 0 or c == 4
                a(f"v_mfma_f32_16x16x32_bf16 {vr(d)}, {breg(c,T)}, {vr(areg(rt,c))}, {'0' if first else vr(d)}")
                if c >= 3 and pend:
                    a(pend.pop(0))
            if rt + 2 < 4: a(load_a(rt + 2, c))
        assert not pend
    if not fused: stamp(a, 4)
    a("s_nop 7")
    a(combine(3))
    a(f"v_lshrrev_b32 v{t3}, 3, v{L}")
    a(f"v_and_b32 v{t2}, 7, v{L}")
    a(f"v_lshlrev_b32 v0, 1, v{t2}")
    a(f"v_xor_b32 v0, v0, v{t3}")
    a(f"v_lshlrev_b32 v0, 4, v0")
    a(f"v_lshl_add_u32 v0, v{t3}, 8, v0")
    a(f"s_lshl_b32 s{S_T0}, s{S_W}, 12")
    a(f"v_add_u32 v0, s{S_T0}, v0")
    a(f"v_xor_b32 v1, 16, v0")
    a(f"v_add_u32 v2, {2*WREG}, v0")
    a(f"v_add_u32 v3, {2*WREG}, v1")
    a(f"v_lshlrev_b32 v4, 4, v{t2}")
    a(f"v_lshl_add_u32 v4, v{t3}, 10, v4")
    a(f"s_lshl_b32 s{S_T0}, s{S_RB}, 16")
    a(f"s_lshl_b32 s{S_T1}, s{S_W}, 14")
    a(f"s_add_u32 s{S_T0}, s{S_T0}, s{S_T1}")
    a(f"s_lshl_b32 s{S_T1}, s{S_CG}, 7")
    a(f"s_add_u32 s{S_T0}, s{S_T0}, s{S_T1}")
    a(f"s_add_u32 s{S_T1}, s{S_T0}, 8192")
    a("s_waitcnt lgkmcnt(0)")
    a("s_barrier")
    R = 96
    for q in (0, 1):
        for w in range(4):
            for e in (0, 1):
                a(f"ds_read_b128 {vr(R + q*32 + w*8 + e*4)}, v{(w>>1)*2 + e} offset:{(w&1)*WREG + q*2048}")
    for q in (0, 1):
        a(f"s_waitcnt lgkmcnt({8 if q == 0 else 0})")
        b = R + q * 32
        for e in range(8): a(f"v_add_f32 v{b+e}, v{b+e}, v{b+8+e}")
        for e in range(8): a(f"v_add_f32 v{b+16+e}, v{b+16+e}, v{b+24+e}")
        for e in range(8): a(f"v_add_f32 v{b+e}, v{b+e}, v{b+16+e}")
        for e in range(4): a(f"v_cvt_pk_bf16_f32 v{b+8+e}, v{b+2*e}, v{b+2*e+1}")
        a((f"buffer_store_dwordx4 {vr(b+8)}, v4, {sr(SOUT)}, s{S_T0 if q == 0 else S_T1} offen", ("O", q)))

def kd(name):
    return f""".amdhsa_kernel {name}
  .amdhsa_next_free_vgpr 512
  .amdhsa_next_free_sgpr 102
  .amdhsa_accum_offset 256
  .amdhsa_group_segment_fixed_size 0
  .amdhsa_kernarg_size 88
  .amdhsa_user_sgpr_count 2
  .amdhsa_user_sgpr_kernarg_segment_ptr 1
  .amdhsa_system_sgpr_workgroup_id_x 1
.end_amdhsa_kernel
"""

def header(launches):
    ref = open(f"cdna_kernels/{NAME}.s.ref").read().splitlines()
    out = [l for l in ref if l.startswith(";") and "@launch" not in l]
    out += launches
    out += ['.amdgcn_target "amdgcn-amd-amdhsa--gfx950"', ".text"]
    return "\n".join(out) + "\n"

def kstart(name):
    return f".globl {name}\n.p2align 8\n.type {name},@function\n{name}:\n"

def spin_kernel(kidx, slot, red, mult):
    c = Asm()
    c("s_cmp_ge_u32 s2, 1")
    c("s_cbranch_scc1 L_sp_done")
    c(f"s_load_dwordx2 s[{P_WS}:{P_WS+1}], s[0:1], 80")
    c("s_waitcnt lgkmcnt(0)")
    srd(c, SX, P_WS, 1 << 20, 16 << 20)
    c("v_lshlrev_b32 v1, 9, v0")
    for q in range(4):
        c(f"buffer_load_dword v{2+q}, v1, {sr(SX)}, 0 offen offset:{128*q}")
    c(f"s_mov_b32 s61, {kidx*32768 + slot*4}")
    for q in range(4):
        c(f"buffer_load_dword v{6+q}, v1, {sr(SX)}, s61 offen offset:{128*q}")
    c("s_waitcnt vmcnt(0)")
    for q in range(1, 4):
        c(f"v_min_u32 v2, v2, v{2+q}")
        c(f"v_{red}_u32 v6, v6, v{6+q}")
    c("s_nop 1")
    c("v_readlane_b32 s62, v2, 0")
    c("v_readlane_b32 s63, v6, 0")
    for l in range(1, 64):
        c(f"v_readlane_b32 s64, v2, {l}")
        c(f"v_readlane_b32 s65, v6, {l}")
        c("s_nop 3")
        c("s_min_u32 s62, s62, s64")
        c(f"s_{red}_u32 s63, s63, s65")
    c("s_sub_u32 s63, s63, s62")
    c("s_min_u32 s63, s63, 10000")
    c(f"s_mul_i32 s63, s63, {mult}")
    c("s_add_u32 s63, s63, 10000")
    c("s_mov_b32 s66, 2000000")
    c("L_sp:")
    c("s_memrealtime s[64:65]")
    c("s_waitcnt lgkmcnt(0)")
    c("s_sub_u32 s64, s64, s62")
    c("s_cmp_ge_u32 s64, s63")
    c("s_cbranch_scc1 L_sp_done")
    c("s_sub_u32 s66, s66, 1")
    c("s_cmp_lg_u32 s66, 0")
    c("s_cbranch_scc1 L_sp")
    c("L_sp_done:")
    c("s_endpgm")
    return c.text()

SPIN = None
def gen_2k(extra_empty=0):
    opt = dict(st="", ld="", early_a=True)
    a = Asm()
    common_prologue(a, 256, "L_s1_done")
    code_prefetch(a, 32768)
    a(f"s_cmp_ge_u32 s{S_J}, 21")
    a("s_cbranch_scc1 L_qkv")
    saved = list(a.vm)
    stage1_ffn(a, opt)
    stamp(a, 4)
    stamp_flush(a, 0)
    a("s_endpgm")
    a("L_qkv:")
    a.vm = saved
    stage1_qkv(a, opt)
    stamp(a, 4)
    stamp_flush(a, 0)
    a("L_s1_done:")
    a("s_endpgm")
    b = Asm()
    common_prologue(b, 256, "L_s2_done")
    code_prefetch(b, 8192)
    stage2(b, opt)
    stamp(b, 5)
    stamp_flush(b, 1)
    b("L_s2_done:")
    b("s_endpgm")
    launches = ["; @launch kernel=s1_kernel grid=(256,1,1) block=(256,1,1) lds=155648",
                "; @launch kernel=s2_kernel grid=(256,1,1) block=(256,1,1) lds=147456"]
    for _ in range(extra_empty):
        launches.append("; @launch kernel=e_kernel grid=(256,1,1) block=(256,1,1) lds=0" if SPIN is None else "; @launch kernel=e_kernel grid=(1,1,1) block=(64,1,1) lds=0")
    txt = header(launches) + kstart("s1_kernel") + a.text() + "\n" + kstart("s2_kernel") + b.text() + "\n"
    if extra_empty: txt += kstart("e_kernel") + ("  s_endpgm\n" if SPIN is None else spin_kernel(*SPIN) + "\n")
    txt += ".fill 2048, 4, 0xbf800000\n"
    txt += '.section .rodata,"a"\n.p2align 6\n' + kd("s1_kernel") + ".p2align 6\n" + kd("s2_kernel")
    if extra_empty: txt += ".p2align 6\n" + kd("e_kernel")
    return txt

S_CNT = 58
S_CIDX = 81
def gen_fused():
    opt = dict(st="sc1", ld="sc1", early_a=False, fused=True)
    a = Asm()
    common_prologue(a, 256, "L_done")
    code_prefetch(a, 40960)
    a("s_waitcnt lgkmcnt(0)")
    a(f"s_add_u32 s{S_CNT}, s{P_WS}, {WS_CNT_OFF}")
    a(f"s_addc_u32 s{S_CNT+1}, s{P_WS+1}, 0")
    a(f"s_cmp_eq_u32 s2, 255")
    a(f"s_cselect_b32 s{S_T0}, s{S_W}, 1")
    a(f"s_cmp_lg_u32 s{S_T0}, 0")
    a("s_cbranch_scc1 L_noinit")
    a("v_lshlrev_b32 v1, 7, v251")
    a("v_mov_b32 v2, 0")
    a(f"global_store_dword v1, v2, s[{S_CNT}:{S_CNT+1}] sc1")
    a("s_waitcnt vmcnt(0)")
    a("v_mov_b32 v1, 0")
    a("v_mov_b32 v2, 1")
    a("s_mov_b64 exec, 1")
    a(f"global_store_dword v1, v2, s[{P_DBG}:{P_DBG+1}] sc1")
    a("s_mov_b64 exec, -1")
    a("L_noinit:")
    a(f"s_cmp_ge_u32 s{S_J}, 21")
    a("s_cbranch_scc1 L_qkv")
    saved = list(a.vm)
    stage1_ffn(a, opt)
    a(f"s_mov_b32 s{S_CIDX}, s{S_RB}")
    a("s_branch L_join")
    a("L_qkv:")
    a.vm = saved
    stage1_qkv(a, opt)
    a(f"s_add_u32 s{S_CIDX}, s{S_RB}, 12")
    a("L_join:")
    stamp(a, 4)
    a("s_waitcnt vmcnt(0)")
    a.vm = []
    a("s_barrier")
    stamp(a, 1)
    a(f"s_cmp_lg_u32 s{S_W}, 0")
    a("s_cbranch_scc1 L_nosig")
    a("s_mov_b64 exec, 1")
    a("v_mov_b32 v1, 0")
    a(f"s_mov_b32 s{S_T0}, 1000000")
    a("L_rdy:")
    a(f"global_load_dword v2, v1, s[{P_DBG}:{P_DBG+1}] sc1")
    a("s_waitcnt vmcnt(0)")
    a("v_cmp_ne_u32 vcc, 1, v2")
    a("s_cbranch_vccz L_rdy_ok")
    a("s_sleep 2")
    a(f"s_sub_u32 s{S_T0}, s{S_T0}, 1")
    a(f"s_cmp_lg_u32 s{S_T0}, 0")
    a("s_cbranch_scc1 L_rdy")
    a("L_rdy_ok:")
    a(f"s_lshl_b32 s{S_T0}, s{S_CIDX}, 8")
    a(f"v_mov_b32 v1, s{S_T0}")
    a("v_mov_b32 v2, 1")
    a(f"global_atomic_add v1, v2, s[{S_CNT}:{S_CNT+1}] sc1")
    a("s_mov_b64 exec, -1")
    a("L_nosig:")
    def sync(a):
        a(f"s_cmp_lg_u32 s{S_W}, 0")
        a("s_cbranch_scc1 L_nopoll")
        a(f"s_lshl_b32 s{S_T0}, s{S_RB}, 2")
        a(f"s_mul_i32 s{S_T1}, s{S_T0}, 5958")
        a(f"s_lshr_b32 s{S_T1}, s{S_T1}, 16")
        a(f"s_add_u32 s{S_T0}, s{S_T0}, 3")
        a(f"s_mul_i32 s{S_T0}, s{S_T0}, 5958")
        a(f"s_lshr_b32 s{S_T0}, s{S_T0}, 16")
        a(f"s_mul_i32 s{S_T2}, s{S_RB}, 21846")
        a(f"s_lshr_b32 s{S_T2}, s{S_T2}, 16")
        a(f"s_add_u32 s{S_T2}, s{S_T2}, 12")
        a("s_mov_b64 exec, 7")
        a(f"v_mov_b32 v32, s{S_T0}")
        a("v_mov_b32 v34, 14")
        a("s_mov_b64 exec, 2")
        a(f"v_mov_b32 v32, s{S_T1}")
        a("s_mov_b64 exec, 4")
        a(f"v_mov_b32 v32, s{S_T2}")
        a("v_mov_b32 v34, 8")
        a("s_mov_b64 exec, 7")
        a("v_lshlrev_b32 v32, 8, v32")
        a(f"s_mov_b32 s{S_T0}, 1000000")
        a("L_poll:")
        a(f"global_load_dword v33, v32, s[{S_CNT}:{S_CNT+1}] sc1")
        a("s_waitcnt vmcnt(0)")
        a("v_cmp_ne_u32 vcc, v33, v34")
        a("s_cbranch_vccz L_poll_ok")
        a("s_sleep 1")
        a(f"s_sub_u32 s{S_T0}, s{S_T0}, 1")
        a(f"s_cmp_lg_u32 s{S_T0}, 0")
        a("s_cbranch_scc1 L_poll")
        a("L_poll_ok:")
        a("s_mov_b64 exec, -1")
        a("L_nopoll:")
        a("s_barrier")
    opt['sync2'] = sync
    stage2(a, opt)
    stamp_flush(a, 0)
    a("L_done:")
    a("s_endpgm")
    kn = NAME + "_kernel"
    if SPIN is None:
        launches = ["; @launch grid=(256,1,1) block=(256,1,1) lds=155648"]
    else:
        launches = [f"; @launch kernel={kn} grid=(256,1,1) block=(256,1,1) lds=155648",
                    "; @launch kernel=e_kernel grid=(1,1,1) block=(64,1,1) lds=0"]
    txt = header(launches) + kstart(kn) + a.text() + "\n"
    if SPIN is not None: txt += kstart("e_kernel") + spin_kernel(*SPIN) + "\n"
    txt += ".fill 2048, 4, 0xbf800000\n"
    txt += '.section .rodata,"a"\n.p2align 6\n' + kd(kn)
    if SPIN is not None: txt += ".p2align 6\n" + kd("e_kernel")
    return txt

if __name__ == "__main__":
    mode = sys.argv[1] if len(sys.argv) > 1 else "2k"
    out = sys.argv[2] if len(sys.argv) > 2 else f"cdna_kernels/{NAME}.s"
    if mode.endswith("-diag"):
        DIAG = True; mode = mode[:-5]
    if len(sys.argv) > 3:
        p = sys.argv[3].split(","); SPIN = (int(p[0]), int(p[1]), p[2], int(p[3]))
    if mode == "2k": txt = gen_2k()
    elif mode == "2k+e": txt = gen_2k(1)
    elif mode == "f1": txt = gen_fused()
    open(out, "w").write(txt)
    print("wrote", out, len(txt), "bytes")
```

```python
import sys
NAME = "gated_mix__sliding_local_dilated__glu_gated_glu__prompt"

NKC = 72
WS_FRAG_BYTES = 128 * NKC * 1024
WS_GATE_OFF = WS_FRAG_BYTES
WS_CNT_OFF = WS_GATE_OFF + 2048 * 8
LOG2E = 1.4426950408889634

import struct
def f2u(x): return struct.unpack("<I", struct.pack("<f", x))[0]

class Asm:
    def __init__(self):
        self.lines = []
        self.vm = []
    def __call__(self, s):
        if isinstance(s, (list, tuple)) and not (len(s) == 2 and isinstance(s, tuple)):
            for x in s: self(x)
            return
        if callable(s):
            s(self); return
        if isinstance(s, tuple):
            self.lines.append("  " + s[0]); self.vm.append(s[1])
            assert len(self.vm) <= 63, len(self.vm)
            return
        self.lines.append(("" if s.endswith(":") else "  ") + s)
    def vmcount(self, pred):
        idx = -1
        for i, t in enumerate(self.vm):
            if pred(t): idx = i
        if idx < 0: return None
        n = len(self.vm) - 1 - idx
        self.vm = self.vm[idx + 1:]
        return n
    def wait(self, pred=None, lgkm=None):
        parts = []
        if pred is not None:
            n = self.vmcount(pred)
            if n is not None:
                assert n <= 63, n
                parts.append(f"vmcnt({n})")
        if lgkm is not None: parts.append(f"lgkmcnt({lgkm})")
        if parts: self("s_waitcnt " + " ".join(parts))
    def text(self): return "\n".join(self.lines)

def vr(b, n=4): return f"v[{b}:{b+n-1}]"
def ar(b, n=4): return f"a[{b}:{b+n-1}]"

SX, SW0, SW1, SWS, SWO, SWD, SOUT, SG = 4, 8, 12, 16, 20, 24, 28, 32
P_X, P_WQKV, P_WO, P_BX, P_WG, P_WU, P_WD, P_GW, P_OUT, P_DBG, P_WS = 36, 38, 40, 42, 44, 46, 48, 50, 52, 54, 56
S_W = 60
S_SOFF = 61
S_XCD, S_J = 62, 63
S_T0, S_T1, S_T2, S_T3 = 64, 65, 66, 67
S_WB, S_XB = 68, 69
S_RB, S_CG = 70, 71
S_M0, S_M1, S_M2, S_M3 = 72, 74, 76, 78
S_C0 = 80

def srd(a, d, p, size, off=0):
    if off:
        a(f"s_add_u32 s{d}, s{p}, {off}")
        a(f"s_addc_u32 s{d+1}, s{p+1}, 0")
    else:
        a(f"s_mov_b32 s{d}, s{p}")
        a(f"s_mov_b32 s{d+1}, s{p+1}")
    a(f"s_mov_b32 s{d+2}, {size}")
    a(f"s_mov_b32 s{d+3}, 0x20000")

def sr(d): return f"s[{d}:{d+3}]"

def interleave(a, mfmas, fillers, tail=None, per_gap=2, start=0):
    n = len(mfmas)
    gaps = [[] for _ in range(n)]
    tail = tail or {}
    flat = fillers
    last = n - 3 if tail else n - 1
    g = start
    total = sum(1 for f in flat if f != "brk")
    span = max(1, last - start)
    cnt = 0
    for f in flat:
        if f == "brk":
            g += 1
            continue
        want = start + (cnt * span) // max(total, 1)
        if want > g: g = want
        while g < n - 1 and len(gaps[g]) >= per_gap: g += 1
        assert g <= last, (g, last)
        gaps[g].append(f)
        cnt += 1
    for i, m in enumerate(mfmas):
        a(m)
        for f in gaps[i]: a(f)
        if i in tail:
            for f in tail[i]: a(f)

DIAG = False
import os
PERTURB = float(os.environ.get("PERTURB", "0"))
S_ST = 86
def stamp(a, i):
    if DIAG: a(f"s_memrealtime s[{S_ST+2*i}:{S_ST+2*i+1}]")
def stamp_flush(a, kidx):
    if not DIAG: return
    a("s_waitcnt vmcnt(0) lgkmcnt(0)")
    a.vm = []
    stamp(a, 7)
    a("s_waitcnt lgkmcnt(0)")
    for i in range(8): a(f"v_mov_b32 v{8+i}, s{S_ST+2*i}")
    srd(a, SX, P_WS, 1 << 20, 16 << 20)
    a(f"s_lshl_b32 s{S_T0}, s2, 7")
    a(f"s_lshl_b32 s{S_T1}, s{S_W}, 5")
    a(f"s_add_u32 s{S_T0}, s{S_T0}, s{S_T1}")
    a(f"s_add_u32 s{S_T0}, s{S_T0}, {kidx*32768}")
    a(f"v_mov_b32 v16, s{S_T0}")
    a("s_mov_b64 exec, 1")
    a(f"buffer_store_dwordx4 v[8:11], v16, {sr(SX)}, 0 offen")
    a(f"buffer_store_dwordx4 v[12:15], v16, {sr(SX)}, 0 offen offset:16")

def common_prologue(a, nwg, done):
    if DIAG:
        for i in range(8): a(f"s_mov_b64 s[{S_ST+2*i}:{S_ST+2*i+1}], 0")
    stamp(a, 0)
    a(f"s_cmp_ge_u32 s2, {nwg}")
    a(f"s_cbranch_scc1 {done}")
    a(f"s_load_dwordx16 s[{P_X}:{P_X+15}], s[0:1], 0")
    a(f"s_load_dwordx4 s[{P_OUT}:{P_OUT+3}], s[0:1], 64")
    a(f"s_load_dwordx2 s[{P_WS}:{P_WS+1}], s[0:1], 80")
    a("v_lshrrev_b32 v250, 6, v0")
    a("v_and_b32 v251, 63, v0")
    a(f"v_readfirstlane_b32 s{S_W}, v250")
    a(f"s_and_b32 s{S_XCD}, s2, 7")
    a(f"s_lshr_b32 s{S_J}, s2, 3")

def code_prefetch(a, nbytes):
    a(f"s_getpc_b64 s[{S_T0}:{S_T1}]")
    a("v_lshlrev_b32 v249, 7, v0")
    for i in range((nbytes + 32767) // 32768):
        a(f"v_cmp_gt_u32 vcc, {min(256, (nbytes - i*32768 + 127)//128)}, v0")
        a(f"s_and_saveexec_b64 s[{S_T2}:{S_T3}], vcc")
        a((f"global_load_dword a255, v249, s[{S_T0}:{S_T1}]", "pf"))
        a(f"s_mov_b64 exec, s[{S_T2}:{S_T3}]")
        a("v_add_u32 v249, 0x8000, v249")

V_W0, V_W1 = 176, 177
V_X = 178
V_WR = 186
V_XR = 190
V_L16 = 196
V_T = 200

def stage1_ffn(a, opt):
    NT = 11
    XBASE, XSLOT, WSLOT = 81920, 24576, 16384
    L = 251
    a(f"s_mul_i32 s{S_T0}, s{S_XCD}, 21")
    a(f"s_add_u32 s{S_T0}, s{S_T0}, s{S_J}")
    a(f"s_mul_i32 s{S_CG}, s{S_T0}, 5462")
    a(f"s_lshr_b32 s{S_CG}, s{S_CG}, 16")
    a(f"s_mul_i32 s{S_T1}, s{S_CG}, 12")
    a(f"s_sub_u32 s{S_RB}, s{S_T0}, s{S_T1}")
    a(f"s_lshl_b32 s{S_WB}, s{S_W}, 12")
    a(f"s_lshl_b32 s{S_XB}, s{S_W}, 10")
    a(f"s_and_b32 s{S_T2}, s{S_W}, 1")
    a(f"s_lshl_b32 s{S_T2}, s{S_T2}, 2")
    t0, t1, t2, t3 = V_T, V_T + 1, V_T + 2, V_T + 3
    a(f"v_lshrrev_b32 v{t0}, 4, v{L}")
    a(f"v_or_b32 v{t1}, s{S_T2}, v{t0}")
    a(f"v_and_b32 v{t2}, 7, v{L}")
    a(f"v_xor_b32 v{t2}, v{t2}, v{t1}")
    a(f"v_lshlrev_b32 v{t2}, 4, v{t2}")
    a(f"v_lshrrev_b32 v{t3}, 3, v{L}")
    a(f"s_mul_i32 s{S_T0}, s{S_RB}, 176")
    a(f"s_lshl_b32 s{S_T1}, s{S_W}, 3")
    a(f"s_add_u32 s{S_T0}, s{S_T0}, s{S_T1}")
    a(f"v_add_u32 v{t3}, s{S_T0}, v{t3}")
    a(f"v_lshl_add_u32 v{V_X}, v{t3}, 10, v{t2}")
    for m in range(1, 6):
        a(f"v_add_u32 v{V_X+m}, {32768*m}, v{V_X}")
    a(f"s_cmp_ge_u32 s{S_W}, 2")
    a(f"s_cselect_b32 s{S_T0}, 0x40000000, 0")
    a(f"v_or_b32 v{V_X+5}, s{S_T0}, v{V_X+5}")
    a(f"v_lshlrev_b32 v{t2}, 1, v{t1}")
    a(f"v_and_b32 v{t3}, 15, v{L}")
    a(f"v_xor_b32 v{t2}, v{t2}, v{t3}")
    a(f"v_lshlrev_b32 v{t2}, 4, v{t2}")
    a(f"v_add_u32 v{t3}, s{S_T1}, v{t0}")
    a(f"v_mul_u32_u24 v{t3}, 3584, v{t3}")
    a(f"s_lshl_b32 s{S_T0}, s{S_CG}, 8")
    a(f"v_add3_u32 v{V_W0}, v{t3}, v{t2}, s{S_T0}")
    a(f"v_add_u32 v{V_W1}, {4*3584}, v{V_W0}")
    a("s_waitcnt lgkmcnt(0)")
    srd(a, SX, P_X, 2048 * 1024)
    srd(a, SW0, P_WG, 512 * 3584)
    srd(a, SW1, P_WU, 512 * 3584)
    srd(a, SWS, P_WS, WS_FRAG_BYTES)

    def dma_w(s):
        out = []
        if s >= 16: return out
        out.append(f"s_mov_b32 s{S_SOFF}, {s*32*3584}")
        for mat in (0, 1):
            for half in (0, 1):
                out.append(f"s_add_u32 m0, s{S_WB}, {(s%5)*WSLOT + mat*2048 + half*1024}")
                out.append("brk")
                out.append((f"buffer_load_dwordx4 v{V_W1 if half else V_W0}, {sr(SW1 if mat else SW0)}, s{S_SOFF} offen lds", ("W", s)))
        return out
    def dma_x(j, ms):
        out = []
        if j >= 8: return out
        for m in ms:
            out.append(f"s_add_u32 m0, s{S_XB}, {XBASE + (j%3)*XSLOT + m*4096 - 128*j}")
            out.append("brk")
            out.append((f"buffer_load_dwordx4 v{V_X+m}, {sr(SX)}, 0 offen offset:{128*j} lds", ("X", j)))
        return out
    def plain(lst):
        for f in lst: a("s_nop 0" if f == "brk" else f)
    plain(dma_x(0, range(6))); plain(dma_w(0)); plain(dma_w(1)); plain(dma_x(1, range(6)))
    plain(dma_w(2)); plain(dma_w(3)); plain(dma_x(2, range(6))); plain(dma_w(4))
    a(f"v_lshrrev_b32 v{t1}, 2, v{L}")
    a(f"v_and_b32 v{t1}, 3, v{t1}")
    a(f"v_and_b32 v{t2}, 1, v{t0}")
    a(f"v_lshl_or_b32 v{t2}, v{t2}, 2, v{t1}")
    a(f"s_lshl_b32 s{S_T0}, s{S_W}, 1")
    a(f"v_xor_b32 v{t2}, s{S_T0}, v{t2}")
    a(f"v_lshlrev_b32 v{t2}, 5, v{t2}")
    a(f"v_lshl_add_u32 v{t2}, v{t0}, 12, v{t2}")
    a(f"v_lshl_add_u32 v{t2}, v{t1}, 8, v{t2}")
    a(f"v_and_b32 v{t3}, 3, v{L}")
    a(f"v_lshl_add_u32 v{V_WR}, v{t3}, 3, v{t2}")
    a(f"v_xor_b32 v{V_WR+1}, 32, v{V_WR}")
    a(f"v_add_u32 v{V_WR+2}, 0x10000, v{V_WR}")
    a(f"v_add_u32 v{V_WR+3}, 0x10000, v{V_WR+1}")
    a(f"v_and_b32 v{t1}, 15, v{L}")
    a(f"v_lshrrev_b32 v{t2}, 1, v{t1}")
    a(f"v_xor_b32 v{t2}, v{t2}, v{t0}")
    a(f"v_lshlrev_b32 v{t2}, 4, v{t2}")
    a(f"v_lshl_add_u32 v{t2}, v{t1}, 7, v{t2}")
    a(f"v_xor_b32 v{t3}, 64, v{t2}")
    for sl in range(3):
        a(f"v_add_u32 v{V_XR+2*sl}, {XBASE + sl*XSLOT}, v{t2}")
        a(f"v_add_u32 v{V_XR+2*sl+1}, {XBASE + sl*XSLOT}, v{t3}")
    a(f"v_lshlrev_b32 v{V_L16}, 4, v{L}")

    def WF(p, c): return p * 16 + c * 4
    def XF(p, t): return 32 + p * 44 + t * 4
    def reads(s):
        out = []
        if s >= 16: return out
        p = s & 1
        sl = s % 5
        for c in range(4):
            mat, T = c >> 1, c & 1
            for h in (0, 1):
                off = sl * WSLOT + mat * 2048 + h * 1024
                reg = V_WR + T
                if off >= 65536: off -= 65536; reg += 2
                out.append(f"ds_read_b64_tr_b16 {ar(WF(p,c)+2*h, 2)}, v{reg} offset:{off}")
        j, kk = s >> 1, s & 1
        for t in range(NT):
            out.append(f"ds_read_b128 {ar(XF(p,t))}, v{V_XR + 2*(j%3) + kk} offset:{t*2048}")
        return out
    def need(s):
        return lambda t: t == ("W", s) or t == ("X", s >> 1)
    if not opt.get('fused'): stamp(a, 1)
    a.wait(need(0))
    a("s_barrier")
    stamp(a, 2)
    if DIAG and not opt.get('fused'): a(f"s_memtime s[{S_ST+10}:{S_ST+11}]")
    if DIAG: a("s_waitcnt lgkmcnt(0)")
    plain(reads(0))
    a.wait(need(1), lgkm=0)
    a("s_barrier")
    for s in range(16):
        p = s & 1
        mf = []
        for t in range(NT):
            for c in range(4):
                d = (t * 4 + c) * 4
                mf.append(f"v_mfma_f32_16x16x32_bf16 {vr(d)}, {ar(WF(p,c))}, {ar(XF(p,t))}, {'0' if s == 0 else vr(d)}")
        rd = reads(s + 1)
        dm = dma_w(s + 5)
        if s >= 1:
            j = (s - 1) // 2 + 3
            dm = dm + dma_x(j, range(0, 3) if (s & 1) else range(3, 6))
        fl = []
        ri = 0
        groups = []
        cur = []
        for f in dm:
            cur.append(f)
            if isinstance(f, tuple): groups.append(cur); cur = []
        per = max(1, (len(rd) + max(len(groups), 1) - 1) // max(len(groups), 1))
        gi = 0
        while ri < len(rd) or gi < len(groups):
            fl += rd[ri:ri + per]; ri += per
            if gi < len(groups): fl += groups[gi]; gi += 1
        tail = {}
        if s < 15:
            tail[len(mf) - 2] = [(lambda aa, s=s: aa.wait(need(s + 2), lgkm=0)), "s_barrier"] if s < 14 else [(lambda aa: aa.wait(None, lgkm=0))]
        interleave(a, mf, fl, tail or {len(mf) - 2: []})
    stamp(a, 3)
    if DIAG and not opt.get('fused'): a(f"s_memtime s[{S_ST+12}:{S_ST+13}]")
    a(f"s_mul_i32 s{S_T0}, s{S_RB}, {11*NKC}")
    a(f"s_lshl_b32 s{S_T1}, s{S_CG}, 2")
    a(f"s_add_u32 s{S_T0}, s{S_T0}, s{S_T1}")
    a(f"s_add_u32 s{S_T0}, s{S_T0}, s{S_W}")
    a(f"s_add_u32 s{S_T0}, s{S_T0}, 16")
    a(f"s_lshl_b32 s{S_SOFF}, s{S_T0}, 10")
    a(f"s_mov_b32 s{S_C0}, {f2u(-LOG2E)}")
    a("s_nop 4")
    for t in range(NT):
        g = t * 16; u = g + 8
        o = V_T + 4 * (t & 1)
        for e in range(8): a(f"v_mul_f32 v{g+e}, s{S_C0}, v{g+e}")
        for e in range(8): a(f"v_exp_f32 v{g+e}, v{g+e}")
        for e in range(8): a(f"v_add_f32 v{g+e}, 1.0, v{g+e}")
        for e in range(8): a(f"v_rcp_f32 v{g+e}, v{g+e}")
        for e in range(8): a(f"v_mul_f32 v{g+e}, v{g+e}, v{u+e}")
        for e in range(4): a(f"v_cvt_pk_bf16_f32 v{o+e}, v{g+2*e}, v{g+2*e+1}")
        a((f"buffer_store_dwordx4 {vr(o)}, v{V_L16}, {sr(SWS)}, s{S_SOFF} offen {opt['st']}", ("ST", t)))
        a(f"s_add_u32 s{S_SOFF}, s{S_SOFF}, {NKC*1024}")

def stage1_qkv(a, opt):
    XBASE, XSLOT, WSLOT, GWBASE = 61440, 28672, 12288, 147456
    L = 251
    V_WQ = 176
    V_GX = 197
    V_GW = 199
    t0, t1, t2, t3 = V_T, V_T + 1, V_T + 2, V_T + 3
    a(f"s_sub_u32 s{S_RB}, s{S_J}, 21")
    a(f"s_mov_b32 s{S_CG}, s{S_XCD}")
    a(f"s_mul_i32 s{S_WB}, s{S_W}, 3072")
    a(f"s_lshl_b32 s{S_XB}, s{S_W}, 10")
    a(f"s_and_b32 s{S_T2}, s{S_W}, 1")
    a(f"s_lshl_b32 s{S_T3}, s{S_T2}, 2")
    a(f"v_lshrrev_b32 v{t0}, 4, v{L}")
    a(f"v_or_b32 v{t1}, s{S_T3}, v{t0}")
    a(f"v_and_b32 v{t2}, 7, v{L}")
    a(f"v_xor_b32 v{t2}, v{t2}, v{t1}")
    a(f"v_lshlrev_b32 v{t2}, 4, v{t2}")
    a(f"v_lshrrev_b32 v{t3}, 3, v{L}")
    a(f"s_mul_i32 s{S_T0}, s{S_RB}, 192")
    a(f"s_lshl_b32 s{S_T1}, s{S_W}, 3")
    a(f"s_add_u32 s{S_T0}, s{S_T0}, s{S_T1}")
    a(f"s_sub_u32 s{S_T0}, s{S_T0}, 16")
    a(f"v_add_u32 v{t3}, s{S_T0}, v{t3}")
    a(f"v_lshl_add_u32 v{V_X}, v{t3}, 10, v{t2}")
    for m in range(1, 7):
        a(f"v_add_u32 v{V_X+m}, {32768*m}, v{V_X}")
    a(f"s_cmp_ge_u32 s{S_W}, 2")
    a(f"s_cselect_b32 s{S_T0}, 0x40000000, 0")
    a(f"v_or_b32 v{V_X+6}, s{S_T0}, v{V_X+6}")
    a(f"v_and_b32 v{t1}, 1, v{t0}")
    a(f"v_lshlrev_b32 v{t1}, 1, v{t1}")
    a(f"v_or_b32 v{t1}, s{S_T3}, v{t1}")
    a(f"v_and_b32 v{t2}, 7, v{L}")
    a(f"v_xor_b32 v{t2}, v{t2}, v{t1}")
    a(f"v_lshlrev_b32 v{t2}, 4, v{t2}")
    a(f"v_lshrrev_b32 v{t3}, 3, v{L}")
    a(f"v_add_u32 v{t3}, s{S_T1}, v{t3}")
    a(f"v_mul_u32_u24 v{t3}, 3072, v{t3}")
    a(f"s_lshl_b32 s{S_T0}, s{S_CG}, 7")
    a(f"v_add3_u32 v{V_WQ}, v{t3}, v{t2}, s{S_T0}")
    a(f"v_lshlrev_b32 v{V_L16}, 4, v{L}")
    a("s_waitcnt lgkmcnt(0)")
    srd(a, SX, P_X, 2048 * 1024)
    srd(a, SW0, P_WQKV, 512 * 3072)
    srd(a, SW1, P_GW, 1024)
    srd(a, SWS, P_WS, WS_FRAG_BYTES)
    srd(a, SG, P_WS, 2048 * 8, WS_GATE_OFF)

    def dma_w(s):
        out = []
        if s >= 16: return out
        out.append(f"s_mov_b32 s{S_SOFF}, {s*32*3072}")
        out.append(f"s_add_u32 m0, s{S_WB}, {(s%5)*WSLOT}")
        out.append("brk")
        for mat in range(3):
            out.append((f"buffer_load_dwordx4 v{V_WQ}, {sr(SW0)}, s{S_SOFF} offen offset:{mat*1024} lds", ("W", s)))
        return out
    def dma_x(j, ms):
        out = []
        if j >= 8: return out
        for m in ms:
            out.append(f"s_add_u32 m0, s{S_XB}, {XBASE + (j%3)*XSLOT + m*4096 - 128*j}")
            out.append("brk")
            out.append((f"buffer_load_dwordx4 v{V_X+m}, {sr(SX)}, 0 offen offset:{128*j} lds", ("X", j)))
        return out
    def plain(lst):
        for f in lst: a("s_nop 0" if f == "brk" else f)
    a(f"s_mov_b32 m0, {GWBASE}")
    a("s_nop 0")
    a((f"buffer_load_dwordx4 v{V_L16}, {sr(SW1)}, 0 offen lds", ("X", 0)))
    plain(dma_x(0, range(7))); plain(dma_w(0)); plain(dma_w(1)); plain(dma_x(1, range(7)))
    plain(dma_w(2)); plain(dma_w(3)); plain(dma_x(2, range(7))); plain(dma_w(4))
    a(f"v_lshrrev_b32 v{t1}, 2, v{L}")
    a(f"v_and_b32 v{t1}, 3, v{t1}")
    a(f"v_and_b32 v{t2}, 1, v{t0}")
    a(f"v_lshlrev_b32 v{t2}, 1, v{t2}")
    a(f"v_lshrrev_b32 v{t3}, 1, v{t1}")
    a(f"v_or_b32 v{t2}, v{t2}, v{t3}")
    a(f"s_lshl_b32 s{S_T0}, s{S_T2}, 1")
    a(f"v_xor_b32 v{t2}, s{S_T0}, v{t2}")
    a(f"v_lshlrev_b32 v{t2}, 5, v{t2}")
    a(f"v_mul_u32_u24 v{t3}, 3072, v{t0}")
    a(f"v_add_u32 v{t2}, v{t2}, v{t3}")
    a(f"v_lshl_add_u32 v{t2}, v{t1}, 7, v{t2}")
    a(f"v_and_b32 v{t3}, 3, v{L}")
    a(f"v_lshl_add_u32 v{V_WR}, v{t3}, 3, v{t2}")
    a(f"v_xor_b32 v{V_WR+1}, 32, v{V_WR}")
    a(f"v_and_b32 v{t1}, 15, v{L}")
    a(f"v_lshrrev_b32 v{t2}, 1, v{t1}")
    a(f"v_xor_b32 v{t2}, v{t2}, v{t0}")
    a(f"v_lshlrev_b32 v{t2}, 4, v{t2}")
    a(f"v_lshl_add_u32 v{t2}, v{t1}, 7, v{t2}")
    a(f"s_lshl_b32 s{S_T0}, s{S_CG}, 2")
    a(f"s_add_u32 s{S_T0}, s{S_T0}, s{S_W}")
    a(f"s_min_u32 s{S_T0}, s{S_T0}, 11")
    a(f"s_add_u32 s{S_T0}, s{S_T0}, 1")
    a(f"s_lshl_b32 s{S_T0}, s{S_T0}, 11")
    a(f"s_add_u32 s{S_T0}, s{S_T0}, {XBASE}")
    a(f"v_add_u32 v{V_GX}, s{S_T0}, v{t2}")
    a(f"v_xor_b32 v{V_GX+1}, 64, v{V_GX}")
    a(f"s_lshr_b32 s{S_T0}, s{S_W}, 1")
    a(f"s_mul_i32 s{S_T0}, s{S_T0}, {6*2048}")
    a(f"v_add_u32 v{t2}, s{S_T0}, v{t2}")
    a(f"v_xor_b32 v{t3}, 64, v{t2}")
    for sl in range(3):
        a(f"v_add_u32 v{V_XR+2*sl}, {XBASE + sl*XSLOT}, v{t2}")
        a(f"v_add_u32 v{V_XR+2*sl+1}, {XBASE + sl*XSLOT}, v{t3}")
    a(f"v_lshlrev_b32 v{V_GW}, 4, v{t0}")
    a(f"v_add_u32 v{V_GW}, {GWBASE}, v{V_GW}")

    def Q(h, t): return (h * 6 + (t - 1)) * 4
    def K(h, t): return 48 + (h * 7 + t) * 4
    def V(h, t): return 104 + (h * 7 + t) * 4
    GA = 160
    def WF(p, mat, h): return p * 24 + (mat * 2 + h) * 4
    def XF(p, t): return 48 + p * 28 + t * 4
    def GX(p): return 104 + p * 8
    def GW(p): return 108 + p * 8
    def reads(s):
        out = []
        if s >= 16: return out
        p = s & 1; sl = s % 5
        for mat in range(3):
            for hh in (0, 1):
                for h in (0, 1):
                    off = sl * WSLOT + mat * 1024 + h * 512
                    out.append(f"ds_read_b64_tr_b16 {ar(WF(p,mat,hh)+2*h, 2)}, v{V_WR+hh} offset:{off}")
        j, kk = s >> 1, s & 1
        for t in range(7):
            out.append(f"ds_read_b128 {ar(XF(p,t))}, v{V_XR + 2*(j%3) + kk} offset:{t*2048}")
        out.append(f"ds_read_b128 {ar(GX(p))}, v{V_GX+kk} offset:{(j%3)*XSLOT}")
        out.append(f"ds_read_b128 {ar(GW(p))}, v{V_GW} offset:{s*64}")
        return out
    def need(s):
        return lambda t: t == ("W", s) or t == ("X", s >> 1)
    if not opt.get('fused'): stamp(a, 1)
    a.wait(need(0))
    a("s_barrier")
    stamp(a, 2)
    if DIAG and not opt.get('fused'): a(f"s_memtime s[{S_ST+10}:{S_ST+11}]")
    if DIAG: a("s_waitcnt lgkmcnt(0)")
    plain(reads(0))
    a.wait(need(1), lgkm=0)
    a("s_barrier")
    for s in range(16):
        p = s & 1
        mf = []
        def M(d, A, B): mf.append(f"v_mfma_f32_16x16x32_bf16 {vr(d)}, {ar(A)}, {ar(B)}, {'0' if s == 0 else vr(d)}")
        M(GA, GW(p), GX(p))
        for t in range(7):
            for hh in (0, 1):
                if t >= 1: M(Q(hh, t), WF(p, 0, hh), XF(p, t))
                M(K(hh, t), WF(p, 1, hh), XF(p, t))
                M(V(hh, t), XF(p, t), WF(p, 2, hh))
        rd = reads(s + 1)
        dm = dma_w(s + 5)
        if s >= 1:
            j = (s - 1) // 2 + 3
            dm = dm + dma_x(j, range(0, 4) if (s & 1) else range(4, 7))
        groups = []; cur = []
        for f in dm:
            cur.append(f)
            if isinstance(f, tuple): groups.append(cur); cur = []
        per = max(1, (len(rd) + max(len(groups), 1) - 1) // max(len(groups), 1))
        fl = []; ri = 0; gi = 0
        while ri < len(rd) or gi < len(groups):
            fl += rd[ri:ri + per]; ri += per
            if gi < len(groups): fl += groups[gi]; gi += 1
        tail = {}
        if s < 15:
            tail[len(mf) - 2] = [(lambda aa, s=s: aa.wait(need(s + 2), lgkm=0)), "s_barrier"] if s < 14 else [(lambda aa: aa.wait(None, lgkm=0))]
        interleave(a, mf, fl, tail or {len(mf) - 2: []})

    stamp(a, 3)
    if DIAG and not opt.get('fused'): a(f"s_memtime s[{S_ST+12}:{S_ST+13}]")
    SELY, SELP = 176, 178
    j_, g_, par, d1 = t0, t1, t2, t3
    a(f"v_and_b32 v{j_}, 15, v{L}")
    a(f"v_lshrrev_b32 v{g_}, 4, v{L}")
    a(f"v_and_b32 v{par}, 1, v{j_}")
    a(f"v_lshlrev_b32 v{g_}, 2, v{g_}")
    a(f"v_sub_u32 v{d1}, v{j_}, v{g_}")
    a(f"v_sub_u32 v{d1}, v{d1}, v{par}")
    a(f"v_cmp_le_i32 s[{S_M0}:{S_M0+1}], 0, v{d1}")
    a(f"v_cmp_le_i32 s[{S_M1}:{S_M1+1}], 2, v{d1}")
    a(f"v_cmp_eq_u32 vcc, 1, v{par}")
    t4, t5 = V_T + 4, V_T + 5
    a(f"v_mov_b32 v{t4}, 0x01000c0c")
    a(f"v_mov_b32 v{t5}, 0x03020c0c")
    a(f"v_cndmask_b32 v{t4}, v{t4}, v{t5}, vcc")
    a(f"v_add_u32 v{t5}, 0x04040000, v{t4}")
    a(f"v_cndmask_b32 v{SELY}, v{t4}, v{t5}, s[{S_M0}:{S_M0+1}]")
    a(f"v_cndmask_b32 v{SELY+1}, v{t4}, v{t5}, s[{S_M1}:{S_M1+1}]")
    zero = V_T + 6
    a(f"v_mov_b32 v{zero}, 0x0c0c0c0c")
    for u in (0, 1):
        lo = 0x0c0c0000 | ((2*u+1) << 8) | (2*u)
        hi = 0x00000c0c | ((2*u+1) << 24) | ((2*u) << 16)
        a(f"v_mov_b32 v{t4}, {lo}")
        a(f"v_mov_b32 v{t5}, {hi}")
        a(f"v_cndmask_b32 v{t4}, v{t4}, v{t5}, vcc")
        M_ = S_M0 if u == 0 else S_M1
        a(f"v_cndmask_b32 v{SELP+u}, v{t4}, v{zero}, s[{M_}:{M_+1}]")
        a(f"v_cndmask_b32 v{SELP+2+u}, v{zero}, v{t4}, s[{M_}:{M_+1}]")
    a(f"s_lshr_b32 s{S_T0}, s{S_W}, 1")
    a(f"s_or_b32 s{S_T0}, s{S_T0}, s{S_RB}")
    a(f"s_not_b64 s[{S_M2}:{S_M2+1}], s[{S_M0}:{S_M0+1}]")
    a(f"s_not_b64 s[{S_M3}:{S_M3+1}], s[{S_M1}:{S_M1+1}]")
    a(f"s_cmp_eq_u32 s{S_T0}, 0")
    a(f"s_cselect_b64 s[{S_M2}:{S_M2+1}], s[{S_M2}:{S_M2+1}], 0")
    a(f"s_cselect_b64 s[{S_M3}:{S_M3+1}], s[{S_M3}:{S_M3+1}], 0")
    NEG = 182
    a(f"v_mov_b32 v{NEG}, {f2u(-4e9)}")
    a(f"s_mov_b32 s{S_C0}, {f2u(0.25*LOG2E)}")
    a(f"s_mov_b32 s{S_C0+1}, {f2u(-LOG2E)}")
    a(f"v_cvt_pk_bf16_f32 v{t4}, v{GA}, v{GA}")
    a(f"v_and_b32 v{t4}, 0xffff0000, v{t4}")
    a(f"v_mul_f32 v{t4}, s{S_C0+1}, v{t4}")
    a(f"v_exp_f32 v{t4}, v{t4}")
    a("s_nop 0")
    a(f"v_add_f32 v{t4}, 1.0, v{t4}")
    a(f"v_rcp_f32 v{t4}, v{t4}")
    a("s_nop 0")
    a(f"v_cvt_pk_bf16_f32 v{t4}, v{t4}, v{t4}")
    a(f"v_and_b32 v{t4}, 0xffff0000, v{t4}")
    a(f"v_sub_f32 v{t5}, 1.0, v{t4}")
    a(f"v_cvt_pk_bf16_f32 v{t5}, v{t5}, v{t5}")
    a(f"v_and_b32 v{t5}, 0xffff0000, v{t5}")
    a(f"s_lshl_b32 s{S_T0}, s{S_CG}, 2")
    a(f"s_add_u32 s{S_T0}, s{S_T0}, s{S_W}")
    a(f"s_mul_i32 s{S_T1}, s{S_RB}, 12")
    a(f"s_add_u32 s{S_T1}, s{S_T1}, s{S_T0}")
    a(f"s_lshl_b32 s{S_T1}, s{S_T1}, 7")
    a(f"s_cmp_ge_u32 s{S_T0}, 12")
    a(f"s_cselect_b32 s{S_T1}, 0x40000000, s{S_T1}")
    a(f"v_lshlrev_b32 v{g_}, 16, v{g_}")
    a(f"v_lshl_add_u32 v{g_}, v{j_}, 3, v{g_}")
    a(f"v_add_u32 v{g_}, s{S_T1}, v{g_}")
    a((f"buffer_store_dwordx2 {vr(t4,2)}, v{g_}, {sr(SG)}, 0 offen {opt['st']}", ("ST", -1)))
    VP = 208
    for hh in (0, 1):
        for t in range(7):
            if t >= 1:
                q = Q(hh, t)
                a(f"v_cvt_pk_bf16_f32 v{q}, v{q}, v{q+1}")
                a(f"v_cvt_pk_bf16_f32 v{q+1}, v{q+2}, v{q+3}")
            k = K(hh, t)
            a(f"v_cvt_pk_bf16_f32 v{k}, v{k}, v{k+1}")
            a(f"v_cvt_pk_bf16_f32 v{k+1}, v{k+2}, v{k+3}")
            v = V(hh, t)
            a(f"v_cvt_pk_bf16_f32 v{VP+hh*14+2*t}, v{v}, v{v+1}")
            a(f"v_cvt_pk_bf16_f32 v{VP+hh*14+2*t+1}, v{v+2}, v{v+3}")
    a(f"s_lshr_b32 s{S_T0}, s{S_W}, 1")
    a(f"s_mul_i32 s{S_T0}, s{S_T0}, 6")
    a(f"s_mul_i32 s{S_T1}, s{S_RB}, 12")
    a(f"s_add_u32 s{S_T0}, s{S_T0}, s{S_T1}")
    a(f"s_mul_i32 s{S_T0}, s{S_T0}, {NKC}")
    a(f"s_lshl_b32 s{S_T1}, s{S_CG}, 1")
    a(f"s_add_u32 s{S_T0}, s{S_T0}, s{S_T1}")
    a(f"s_and_b32 s{S_T1}, s{S_W}, 1")
    a(f"s_add_u32 s{S_T0}, s{S_T0}, s{S_T1}")
    a(f"s_lshl_b32 s{S_SOFF}, s{S_T0}, 10")
    OUT = 236
    for half in (0, 1):
        units = [(t, hh) for t in range(1 + 3 * half, 4 + 3 * half) for hh in (0, 1)]
        def S(n): return 104 + 8 * n
        for n, (t, hh) in enumerate(units):
            a(f"v_mfma_f32_16x16x16_bf16 {vr(S(n))}, {vr(K(hh,t-1),2)}, {vr(Q(hh,t),2)}, 0")
            a(f"v_mfma_f32_16x16x16_bf16 {vr(S(n)+4)}, {vr(K(hh,t),2)}, {vr(Q(hh,t),2)}, 0")
        a("s_nop 7")
        U = range(6)
        for n in U:
            s = S(n)
            a(f"v_cvt_pk_bf16_f32 v{s}, v{s}, v{s+1}")
            a(f"v_cvt_pk_bf16_f32 v{s+1}, v{s+2}, v{s+3}")
            a(f"v_cvt_pk_bf16_f32 v{s+4}, v{s+4}, v{s+5}")
            a(f"v_cvt_pk_bf16_f32 v{s+5}, v{s+6}, v{s+7}")
            a(f"v_perm_b32 v{s+2}, v{s+4}, v{s}, v{SELY}")
            a(f"v_perm_b32 v{s+3}, v{s+5}, v{s+1}, v{SELY+1}")
            if units[n][0] == 1:
                a(f"v_cndmask_b32 v{s+2}, v{s+2}, v{NEG}, s[{S_M2}:{S_M2+1}]")
                a(f"v_cndmask_b32 v{s+3}, v{s+3}, v{NEG}, s[{S_M3}:{S_M3+1}]")
        def allreduce(op):
            for swap in ("v_permlane16_swap_b32", "v_permlane32_swap_b32"):
                for n in U: a(f"v_mov_b32 v{S(n)+1}, v{S(n)}")
                a("s_nop 1")
                for n in U: a(f"{swap} v{S(n)}, v{S(n)+1}")
                a("s_nop 1")
                for n in U: a(f"{op} v{S(n)}, v{S(n)}, v{S(n)+1}")
        for n in U: a(f"v_max_f32 v{S(n)}, v{S(n)+2}, v{S(n)+3}")
        allreduce("v_max_f32")
        for n in U:
            a(f"v_sub_f32 v{S(n)+2}, v{S(n)+2}, v{S(n)}")
            a(f"v_sub_f32 v{S(n)+3}, v{S(n)+3}, v{S(n)}")
        for n in U:
            a(f"v_mul_f32 v{S(n)+2}, s{S_C0}, v{S(n)+2}")
            a(f"v_mul_f32 v{S(n)+3}, s{S_C0}, v{S(n)+3}")
        for n in U:
            a(f"v_exp_f32 v{S(n)+2}, v{S(n)+2}")
            a(f"v_exp_f32 v{S(n)+3}, v{S(n)+3}")
        a("s_nop 0")
        for n in U: a(f"v_add_f32 v{S(n)}, v{S(n)+2}, v{S(n)+3}")
        allreduce("v_add_f32")
        for n in U: a(f"v_rcp_f32 v{S(n)}, v{S(n)}")
        a("s_nop 0")
        for n in U:
            a(f"v_mul_f32 v{S(n)+2}, v{S(n)+2}, v{S(n)}")
            a(f"v_mul_f32 v{S(n)+3}, v{S(n)+3}, v{S(n)}")
        for n in U: a(f"v_cvt_pk_bf16_f32 v{S(n)}, v{S(n)+2}, v{S(n)+3}")
        for n in U:
            for q in range(4):
                a(f"v_perm_b32 v{S(n)+4+q}, v{S(n)}, v{S(n)}, v{SELP+q}")
        a("s_nop 1")
        for n, (t, hh) in enumerate(units):
            a(f"v_mfma_f32_16x16x32_bf16 {vr(S(n))}, {vr(VP+hh*14+2*(t-1))}, {vr(S(n)+4)}, 0")
        a("s_nop 7")
        for n, (t, hh) in enumerate(units):
            o = OUT + 4 * (n >> 1) + 2 * hh
            a(f"v_cvt_pk_bf16_f32 v{o}, v{S(n)}, v{S(n)+1}")
            a(f"v_cvt_pk_bf16_f32 v{o+1}, v{S(n)+2}, v{S(n)+3}")
            if hh == 1:
                a((f"buffer_store_dwordx4 {vr(OUT + 4*(n>>1))}, v{V_L16}, {sr(SWS)}, s{S_SOFF} offen {opt['st']}", ("ST", t)))
                a(f"s_add_u32 s{S_SOFF}, s{S_SOFF}, {NKC*1024}")
        if half == 0: a("s_nop 1")

def stage2(a, opt):
    L = 251
    WREG = 36864
    V_B = 0
    V_ACC = 32
    V_A = 96
    V_BD, V_BR, V_L16b, V_G, V_RW = 240, 241, 245, 246, 248
    t0, t1, t2, t3 = 252, 253, 254, 255
    ld = opt['ld']
    a(f"s_lshl_b32 s{S_RB}, s{S_XCD}, 2")
    a(f"s_lshr_b32 s{S_T0}, s{S_J}, 3")
    a(f"s_add_u32 s{S_RB}, s{S_RB}, s{S_T0}")
    a(f"s_and_b32 s{S_CG}, s{S_J}, 7")
    a(f"s_mul_i32 s{S_WB}, s{S_W}, {WREG}")
    a(f"v_lshrrev_b32 v{t0}, 4, v{L}")
    a(f"v_lshlrev_b32 v{t1}, 1, v{t0}")
    a(f"v_and_b32 v{t2}, 7, v{L}")
    a(f"v_xor_b32 v{t2}, v{t2}, v{t1}")
    a(f"v_lshlrev_b32 v{t2}, 4, v{t2}")
    a(f"v_lshrrev_b32 v{t3}, 3, v{L}")
    a(f"v_lshl_add_u32 v{t2}, v{t3}, 10, v{t2}")
    a(f"s_lshl_b32 s{S_T0}, s{S_CG}, 7")
    a(f"v_add_u32 v{V_BD}, s{S_T0}, v{t2}")
    a(f"v_lshlrev_b32 v{V_L16b}, 4, v{L}")
    a("s_waitcnt lgkmcnt(0)")
    srd(a, SWO, P_WO, 512 * 1024)
    srd(a, SWD, P_WD, 1792 * 1024)
    srd(a, SWS, P_WS, WS_FRAG_BYTES)
    srd(a, SG, P_WS, 2048 * 8, WS_GATE_OFF)
    srd(a, SOUT, P_OUT, 2048 * 1024)
    S_BO, S_BH, S_AO, S_AH = 82, 83, 84, 85
    a(f"s_mul_i32 s{S_BO}, s{S_W}, {4*32*1024}")
    a(f"s_mul_i32 s{S_BH}, s{S_W}, {14*32*1024}")
    a(f"s_mul_i32 s{S_T0}, s{S_RB}, {4*NKC*1024}")
    a(f"s_lshl_b32 s{S_AO}, s{S_W}, 12")
    a(f"s_add_u32 s{S_AO}, s{S_AO}, s{S_T0}")
    a(f"s_mul_i32 s{S_AH}, s{S_W}, {14*1024}")
    a(f"s_add_u32 s{S_AH}, s{S_AH}, s{S_T0}")
    a(f"s_add_u32 s{S_AH}, s{S_AH}, {16*1024}")
    def dma_b(c):
        for n in range(4):
            if c < 4: a(f"s_add_u32 s{S_SOFF}, s{S_BO}, {(c*32 + n*8)*1024}")
            else: a(f"s_add_u32 s{S_SOFF}, s{S_BH}, {((c-4)*32 + n*8)*1024}")
            a(f"s_add_u32 m0, s{S_WB}, {(c%9)*4096 + n*1024}")
            a("s_nop 0")
            a((f"buffer_load_dwordx4 v{V_BD}, {sr(SWO if c < 4 else SWD)}, s{S_SOFF} offen lds", ("B", c)))
    def breg(c, T, n=4, o=0):
        if c < 16: return ar(c * 16 + T * 4 + o, n)
        return vr(V_B + (c - 16) * 16 + T * 4 + o, n)
    def areg(rt, c): return V_A + ((rt * 18 + c) % 36) * 4
    def load_a(rt, c):
        out = []
        base = S_AO if c < 4 else S_AH
        cc = c if c < 4 else c - 4
        q, r = divmod(cc, 4)
        if r == 0: out.append(f"s_add_u32 s{S_SOFF}, s{base}, {rt*NKC*1024 + q*4096}")
        out.append((f"buffer_load_dwordx4 {vr(areg(rt,c))}, v{V_L16b}, {sr(SWS)}, s{S_SOFF} offen offset:{r*1024} {ld}", ("A", rt, c)))
        return out
    for c in range(9): dma_b(c)
    a(f"v_lshrrev_b32 v{t1}, 2, v{L}")
    a(f"v_lshrrev_b32 v{t2}, 1, v{t1}")
    a(f"v_and_b32 v{t2}, 3, v{t2}")
    a(f"v_lshlrev_b32 v{t2}, 5, v{t2}")
    a(f"v_lshl_add_u32 v{t2}, v{t1}, 7, v{t2}")
    a(f"v_and_b32 v{t3}, 3, v{L}")
    a(f"v_lshl_add_u32 v{t2}, v{t3}, 3, v{t2}")
    for T in range(4):
        a(f"v_xor_b32 v{V_BR+T}, {32*T}, v{t2}")
        a(f"v_add_u32 v{V_BR+T}, s{S_WB}, v{V_BR+T}")
    a(f"v_and_b32 v{t1}, 15, v{L}")
    a(f"v_and_b32 v{t2}, 7, v{L}")
    a(f"v_xor_b32 v{t2}, v{t2}, v{t0}")
    a(f"v_lshlrev_b32 v{t2}, 4, v{t2}")
    a(f"v_lshl_add_u32 v{V_RW}, v{t1}, 8, v{t2}")
    def read_b(c):
        for T in range(4):
            for h in (0, 1):
                a(f"ds_read_b64_tr_b16 {breg(c,T,2,2*h)}, v{V_BR+T} offset:{(c%9)*4096 + h*2048}")
    if opt.get('early_a'):
        for c in range(18): a(load_a(0, c))
    fused = opt.get('fused')
    if not fused: stamp(a, 1)
    for c in range(9):
        a.wait(lambda t, c=c: t == ("B", c))
        if c == 0 and not fused:
            stamp(a, 2)
            if DIAG: a("s_waitcnt lgkmcnt(0)")
        read_b(c)
        if c >= 1:
            a("s_waitcnt lgkmcnt(8)")
            dma_b(c - 1 + 9)
    a("s_waitcnt lgkmcnt(0)")
    dma_b(17)
    if opt.get('sync'): opt['sync'](a)
    if not opt.get('early_a'):
        for c in range(9, 18):
            a.wait(lambda t, c=c: t == ("B", c))
            read_b(c)
        if fused:
            a("s_waitcnt lgkmcnt(0)")
            stamp(a, 5)
            opt['sync2'](a)
            stamp(a, 6)
        for c in range(18): a(load_a(0, c))
        for c in range(18): a(load_a(1, c))
    else:
        for c in range(9, 18):
            a.wait(lambda t, c=c: t == ("B", c))
            read_b(c)
            a(load_a(1, 2*(c-9))); a(load_a(1, 2*(c-9)+1))
    VG = 224
    a(f"s_lshl_b32 s{S_T1}, s{S_RB}, 9")
    a(f"v_lshlrev_b32 v{t3}, 3, v{t1}")
    a("s_waitcnt lgkmcnt(0)")
    if not fused: stamp(a, 3)
    GREG = [240, 242, 246, 252]
    for rt in range(4):
        a((f"buffer_load_dwordx2 {vr(GREG[rt],2)}, v{t3}, {sr(SG)}, s{S_T1} offen offset:{rt*128} {ld}", ("G", rt)))
    a(f"v_add_u32 v{V_RW}, s{S_WB}, v{V_RW}")
    a(f"v_xor_b32 v{249}, 64, v{V_RW}")
    a(f"v_xor_b32 v{250}, 128, v{V_RW}")
    a(f"v_xor_b32 v{244}, 192, v{V_RW}")
    RW = [V_RW, 249, 250, 244]
    def combine(rt):
        out = []
        acc = V_ACC + 32 * (rt & 1)
        out.append(lambda aa, rt=rt: aa.wait(lambda t: t == ("G", rt)))
        for T in range(4):
            for e in range(4): out.append(f"v_mul_f32 v{acc+4*T+e}, v{GREG[rt]}, v{acc+4*T+e}")
            for e in range(4): out.append(f"v_fmac_f32 v{acc+4*T+e}, v{GREG[rt]+1}, v{acc+16+4*T+e}")
            out.append(f"ds_write_b128 v{RW[T]}, {vr(acc+4*T)} offset:{rt*4096}")
        return out
    for rt in range(4):
        acc = V_ACC + 32 * (rt & 1)
        pend = combine(rt - 1) if rt >= 1 else []
        for c in range(18):
            a.wait(lambda t, rt=rt, c=c: t == ("A", rt, c))
            for T in range(4):
                d = acc + (0 if c < 4 else 16) + 4 * T
                first = c == 0 or c == 4
                a(f"v_mfma_f32_16x16x32_bf16 {vr(d)}, {breg(c,T)}, {vr(areg(rt,c))}, {'0' if first else vr(d)}")
                if c >= 3 and pend:
                    a(pend.pop(0))
            if rt + 2 < 4: a(load_a(rt + 2, c))
        assert not pend
    if not fused: stamp(a, 4)
    a("s_nop 7")
    a(combine(3))
    a(f"v_lshrrev_b32 v{t3}, 3, v{L}")
    a(f"v_and_b32 v{t2}, 7, v{L}")
    a(f"v_lshlrev_b32 v0, 1, v{t2}")
    a(f"v_xor_b32 v0, v0, v{t3}")
    a(f"v_lshlrev_b32 v0, 4, v0")
    a(f"v_lshl_add_u32 v0, v{t3}, 8, v0")
    a(f"s_lshl_b32 s{S_T0}, s{S_W}, 12")
    a(f"v_add_u32 v0, s{S_T0}, v0")
    a(f"v_xor_b32 v1, 16, v0")
    a(f"v_add_u32 v2, {2*WREG}, v0")
    a(f"v_add_u32 v3, {2*WREG}, v1")
    a(f"v_lshlrev_b32 v4, 4, v{t2}")
    a(f"v_lshl_add_u32 v4, v{t3}, 10, v4")
    a(f"s_lshl_b32 s{S_T0}, s{S_RB}, 16")
    a(f"s_lshl_b32 s{S_T1}, s{S_W}, 14")
    a(f"s_add_u32 s{S_T0}, s{S_T0}, s{S_T1}")
    a(f"s_lshl_b32 s{S_T1}, s{S_CG}, 7")
    a(f"s_add_u32 s{S_T0}, s{S_T0}, s{S_T1}")
    a(f"s_add_u32 s{S_T1}, s{S_T0}, 8192")
    a("s_waitcnt lgkmcnt(0)")
    a("s_barrier")
    R = 96
    for q in (0, 1):
        for w in range(4):
            for e in (0, 1):
                a(f"ds_read_b128 {vr(R + q*32 + w*8 + e*4)}, v{(w>>1)*2 + e} offset:{(w&1)*WREG + q*2048}")
    for q in (0, 1):
        a(f"s_waitcnt lgkmcnt({8 if q == 0 else 0})")
        b = R + q * 32
        for e in range(8): a(f"v_add_f32 v{b+e}, v{b+e}, v{b+8+e}")
        for e in range(8): a(f"v_add_f32 v{b+16+e}, v{b+16+e}, v{b+24+e}")
        for e in range(8): a(f"v_add_f32 v{b+e}, v{b+e}, v{b+16+e}")
        if PERTURB and q == 0:
            a(f"s_or_b32 s{S_T2}, s2, s{S_W}")
            a(f"s_cmp_eq_u32 s{S_T2}, 0")
            a(f"s_cselect_b32 s{S_T2}, {f2u(PERTURB)}, 0")
            a("s_mov_b64 exec, 1")
            a(f"v_add_f32 v{b+1}, s{S_T2}, v{b+1}")
            a("s_mov_b64 exec, -1")
        for e in range(4): a(f"v_cvt_pk_bf16_f32 v{b+8+e}, v{b+2*e}, v{b+2*e+1}")
        a((f"buffer_store_dwordx4 {vr(b+8)}, v4, {sr(SOUT)}, s{S_T0 if q == 0 else S_T1} offen", ("O", q)))

def kd(name):
    return f""".amdhsa_kernel {name}
  .amdhsa_next_free_vgpr 512
  .amdhsa_next_free_sgpr 102
  .amdhsa_accum_offset 256
  .amdhsa_group_segment_fixed_size 0
  .amdhsa_kernarg_size 88
  .amdhsa_user_sgpr_count 2
  .amdhsa_user_sgpr_kernarg_segment_ptr 1
  .amdhsa_system_sgpr_workgroup_id_x 1
.end_amdhsa_kernel
"""

def header(launches):
    ref = open(f"cdna_kernels/{NAME}.s.ref").read().splitlines()
    out = [l for l in ref if l.startswith(";") and "@launch" not in l]
    out += launches
    out += ['.amdgcn_target "amdgcn-amd-amdhsa--gfx950"', ".text"]
    return "\n".join(out) + "\n"

def kstart(name):
    return f".globl {name}\n.p2align 8\n.type {name},@function\n{name}:\n"

def spin_kernel(kidx, slot, red, mult):
    c = Asm()
    c("s_cmp_ge_u32 s2, 1")
    c("s_cbranch_scc1 L_sp_done")
    c(f"s_load_dwordx2 s[{P_WS}:{P_WS+1}], s[0:1], 80")
    c("s_waitcnt lgkmcnt(0)")
    srd(c, SX, P_WS, 1 << 20, 16 << 20)
    c("v_lshlrev_b32 v1, 9, v0")
    for q in range(4):
        c(f"buffer_load_dword v{2+q}, v1, {sr(SX)}, 0 offen offset:{128*q}")
    c(f"s_mov_b32 s61, {kidx*32768 + slot*4}")
    for q in range(4):
        c(f"buffer_load_dword v{6+q}, v1, {sr(SX)}, s61 offen offset:{128*q}")
    c("s_waitcnt vmcnt(0)")
    for q in range(1, 4):
        c(f"v_min_u32 v2, v2, v{2+q}")
        c(f"v_{red}_u32 v6, v6, v{6+q}")
    c("s_nop 1")
    c("v_readlane_b32 s62, v2, 0")
    c("v_readlane_b32 s63, v6, 0")
    for l in range(1, 64):
        c(f"v_readlane_b32 s64, v2, {l}")
        c(f"v_readlane_b32 s65, v6, {l}")
        c("s_nop 3")
        c("s_min_u32 s62, s62, s64")
        c(f"s_{red}_u32 s63, s63, s65")
    c("s_sub_u32 s63, s63, s62")
    c("s_min_u32 s63, s63, 10000")
    c(f"s_mul_i32 s63, s63, {mult}")
    c("s_add_u32 s63, s63, 10000")
    c("s_mov_b32 s66, 2000000")
    c("L_sp:")
    c("s_memrealtime s[64:65]")
    c("s_waitcnt lgkmcnt(0)")
    c("s_sub_u32 s64, s64, s62")
    c("s_cmp_ge_u32 s64, s63")
    c("s_cbranch_scc1 L_sp_done")
    c("s_sub_u32 s66, s66, 1")
    c("s_cmp_lg_u32 s66, 0")
    c("s_cbranch_scc1 L_sp")
    c("L_sp_done:")
    c("s_endpgm")
    return c.text()

SPIN = None
def gen_2k(extra_empty=0):
    opt = dict(st="", ld="", early_a=True)
    a = Asm()
    common_prologue(a, 256, "L_s1_done")
    code_prefetch(a, 32768)
    a(f"s_cmp_ge_u32 s{S_J}, 21")
    a("s_cbranch_scc1 L_qkv")
    saved = list(a.vm)
    stage1_ffn(a, opt)
    stamp(a, 4)
    stamp_flush(a, 0)
    a("s_endpgm")
    a("L_qkv:")
    a.vm = saved
    stage1_qkv(a, opt)
    stamp(a, 4)
    stamp_flush(a, 0)
    a("L_s1_done:")
    a("s_endpgm")
    b = Asm()
    common_prologue(b, 256, "L_s2_done")
    code_prefetch(b, 8192)
    stage2(b, opt)
    stamp(b, 5)
    stamp_flush(b, 1)
    b("L_s2_done:")
    b("s_endpgm")
    launches = ["; @launch kernel=s1_kernel grid=(256,1,1) block=(256,1,1) lds=155648",
                "; @launch kernel=s2_kernel grid=(256,1,1) block=(256,1,1) lds=147456"]
    for _ in range(extra_empty):
        launches.append("; @launch kernel=e_kernel grid=(256,1,1) block=(256,1,1) lds=0" if SPIN is None else "; @launch kernel=e_kernel grid=(1,1,1) block=(64,1,1) lds=0")
    txt = header(launches) + kstart("s1_kernel") + a.text() + "\n" + kstart("s2_kernel") + b.text() + "\n"
    if extra_empty: txt += kstart("e_kernel") + ("  s_endpgm\n" if SPIN is None else spin_kernel(*SPIN) + "\n")
    txt += ".fill 2048, 4, 0xbf800000\n"
    txt += '.section .rodata,"a"\n.p2align 6\n' + kd("s1_kernel") + ".p2align 6\n" + kd("s2_kernel")
    if extra_empty: txt += ".p2align 6\n" + kd("e_kernel")
    return txt

S_CNT = 58
S_CIDX = 81
def gen_fused():
    opt = dict(st="sc1", ld="sc1", early_a=False, fused=True)
    a = Asm()
    common_prologue(a, 256, "L_done")
    code_prefetch(a, 40960)
    a("s_waitcnt lgkmcnt(0)")
    a(f"s_add_u32 s{S_CNT}, s{P_WS}, {WS_CNT_OFF}")
    a(f"s_addc_u32 s{S_CNT+1}, s{P_WS+1}, 0")
    a(f"s_cmp_eq_u32 s2, 255")
    a(f"s_cselect_b32 s{S_T0}, s{S_W}, 1")
    a(f"s_cmp_lg_u32 s{S_T0}, 0")
    a("s_cbranch_scc1 L_noinit")
    a("v_lshlrev_b32 v1, 7, v251")
    a("v_mov_b32 v2, 0")
    a(f"global_store_dword v1, v2, s[{S_CNT}:{S_CNT+1}] sc1")
    a("s_waitcnt vmcnt(0)")
    a("v_mov_b32 v1, 0")
    a("v_mov_b32 v2, 1")
    a("s_mov_b64 exec, 1")
    a(f"global_store_dword v1, v2, s[{P_DBG}:{P_DBG+1}] sc1")
    a("s_mov_b64 exec, -1")
    a("L_noinit:")
    a(f"s_cmp_ge_u32 s{S_J}, 21")
    a("s_cbranch_scc1 L_qkv")
    saved = list(a.vm)
    stage1_ffn(a, opt)
    a(f"s_mov_b32 s{S_CIDX}, s{S_RB}")
    a("s_branch L_join")
    a("L_qkv:")
    a.vm = saved
    stage1_qkv(a, opt)
    a(f"s_add_u32 s{S_CIDX}, s{S_RB}, 12")
    a("L_join:")
    stamp(a, 4)
    a("s_waitcnt vmcnt(0)")
    a.vm = []
    a("s_barrier")
    stamp(a, 1)
    a(f"s_cmp_lg_u32 s{S_W}, 0")
    a("s_cbranch_scc1 L_nosig")
    a("s_mov_b64 exec, 1")
    a("v_mov_b32 v1, 0")
    a(f"s_mov_b32 s{S_T0}, 1000000")
    a("L_rdy:")
    a(f"global_load_dword v2, v1, s[{P_DBG}:{P_DBG+1}] sc1")
    a("s_waitcnt vmcnt(0)")
    a("v_cmp_ne_u32 vcc, 1, v2")
    a("s_cbranch_vccz L_rdy_ok")
    a("s_sleep 2")
    a(f"s_sub_u32 s{S_T0}, s{S_T0}, 1")
    a(f"s_cmp_lg_u32 s{S_T0}, 0")
    a("s_cbranch_scc1 L_rdy")
    a("L_rdy_ok:")
    a(f"s_lshl_b32 s{S_T0}, s{S_CIDX}, 8")
    a(f"v_mov_b32 v1, s{S_T0}")
    a("v_mov_b32 v2, 1")
    a(f"global_atomic_add v1, v2, s[{S_CNT}:{S_CNT+1}] sc1")
    a("s_mov_b64 exec, -1")
    a("L_nosig:")
    def sync(a):
        a(f"s_cmp_lg_u32 s{S_W}, 0")
        a("s_cbranch_scc1 L_nopoll")
        a(f"s_lshl_b32 s{S_T0}, s{S_RB}, 2")
        a(f"s_mul_i32 s{S_T1}, s{S_T0}, 5958")
        a(f"s_lshr_b32 s{S_T1}, s{S_T1}, 16")
        a(f"s_add_u32 s{S_T0}, s{S_T0}, 3")
        a(f"s_mul_i32 s{S_T0}, s{S_T0}, 5958")
        a(f"s_lshr_b32 s{S_T0}, s{S_T0}, 16")
        a(f"s_mul_i32 s{S_T2}, s{S_RB}, 21846")
        a(f"s_lshr_b32 s{S_T2}, s{S_T2}, 16")
        a(f"s_add_u32 s{S_T2}, s{S_T2}, 12")
        a("s_mov_b64 exec, 7")
        a(f"v_mov_b32 v32, s{S_T0}")
        a("v_mov_b32 v34, 14")
        a("s_mov_b64 exec, 2")
        a(f"v_mov_b32 v32, s{S_T1}")
        a("s_mov_b64 exec, 4")
        a(f"v_mov_b32 v32, s{S_T2}")
        a("v_mov_b32 v34, 8")
        a("s_mov_b64 exec, 7")
        a("v_lshlrev_b32 v32, 8, v32")
        a(f"s_mov_b32 s{S_T0}, 1000000")
        a("L_poll:")
        a(f"global_load_dword v33, v32, s[{S_CNT}:{S_CNT+1}] sc1")
        a("s_waitcnt vmcnt(0)")
        a("v_cmp_ne_u32 vcc, v33, v34")
        a("s_cbranch_vccz L_poll_ok")
        a("s_sleep 1")
        a(f"s_sub_u32 s{S_T0}, s{S_T0}, 1")
        a(f"s_cmp_lg_u32 s{S_T0}, 0")
        a("s_cbranch_scc1 L_poll")
        a("L_poll_ok:")
        a("s_mov_b64 exec, -1")
        a("L_nopoll:")
        a("s_barrier")
    opt['sync2'] = sync
    stage2(a, opt)
    stamp_flush(a, 0)
    a("L_done:")
    a("s_endpgm")
    kn = NAME + "_kernel"
    if SPIN is None:
        launches = ["; @launch grid=(256,1,1) block=(256,1,1) lds=155648"]
    else:
        launches = [f"; @launch kernel={kn} grid=(256,1,1) block=(256,1,1) lds=155648",
                    "; @launch kernel=e_kernel grid=(1,1,1) block=(64,1,1) lds=0"]
    txt = header(launches) + kstart(kn) + a.text() + "\n"
    if SPIN is not None: txt += kstart("e_kernel") + spin_kernel(*SPIN) + "\n"
    txt += ".fill 2048, 4, 0xbf800000\n"
    txt += '.section .rodata,"a"\n.p2align 6\n' + kd(kn)
    if SPIN is not None: txt += ".p2align 6\n" + kd("e_kernel")
    return txt

if __name__ == "__main__":
    mode = sys.argv[1] if len(sys.argv) > 1 else "2k"
    out = sys.argv[2] if len(sys.argv) > 2 else f"cdna_kernels/{NAME}.s"
    if mode.endswith("-diag"):
        DIAG = True; mode = mode[:-5]
    if len(sys.argv) > 3:
        p = sys.argv[3].split(","); SPIN = (int(p[0]), int(p[1]), p[2], int(p[3]))
    if mode == "2k": txt = gen_2k()
    elif mode == "2k+e": txt = gen_2k(1)
    elif mode == "f1": txt = gen_fused()
    open(out, "w").write(txt)
    print("wrote", out, len(txt), "bytes")
```
